```python
import torch

def _softmax(x, axis=-1):
    return torch.softmax(x, dim=axis)
def _gelu(x):
    return torch.nn.functional.gelu(x, approximate="tanh")
def _silu(x):
    return torch.nn.functional.silu(x)
def _sigmoid(x):
    return torch.sigmoid(x)
def _layernorm(x, axis=-1, eps=1e-5):
    m = x.mean(dim=axis, keepdim=True)
    v = x.var(dim=axis, keepdim=True, unbiased=False)
    return (x - m) / torch.sqrt(v + eps)
def _scatter_add(tgt, idx, src, axis=0):
    return tgt.clone().index_add_(axis, idx, src)
def _segment_sum(src, seg, n):
    out = torch.zeros((n,) + src.shape[1:], dtype=src.dtype)
    return out.index_add_(0, seg, src)
def _pad(x, pw):
    flat = tuple(v for pair in reversed(pw) for v in pair)
    return torch.nn.functional.pad(x, flat)

kernel_name = 'interleave_layers__ssm_conv_s4d__glu_gated_geglu__prompt'

def setup_inputs():

    _w = (lambda a: (lambda t: t.to(torch.bfloat16) if t.is_floating_point() else t)(torch.as_tensor(a)))
    def _A_setup():
        Bsz, L, D, N = 1, 2048, 512, 128
        return {
            "u": _w((lambda *s: torch.randn(*s, dtype=torch.bfloat16) * 0.05)(Bsz, L, D)),
            "log_A_real": _w((lambda *s: torch.randn(*s, dtype=torch.bfloat16) * 3.2)(D, N) * 0.5),
            "A_imag": _w((lambda *s: torch.randn(*s, dtype=torch.bfloat16) * 0.05)(D, N) * 3.14),
            "C_real": _w((lambda *s: torch.randn(*s, dtype=torch.bfloat16) * 0.05)(D, N) / N ** 0.5),
            "C_imag": _w((lambda *s: torch.randn(*s, dtype=torch.bfloat16) * 0.05)(D, N) / N ** 0.5),
            "log_dt": _w((lambda *s: torch.randn(*s, dtype=torch.bfloat16) * 0.05)(D) * 0.5 - 4.0),
            "D_skip": _w((lambda *s: torch.randn(*s, dtype=torch.bfloat16) * 0.05)(D)),
        }
    _A_in = _A_setup()

    def _B_setup():
        B, S, Dm, Df = 1, 2048, 512, 1376
        return {
            "x": _w((lambda *s: torch.randn(*s, dtype=torch.bfloat16) * 0.05)(B, S, Dm)),
            "w_gate": _w((lambda *s: torch.randn(*s, dtype=torch.bfloat16) * 0.8)(Dm, Df) * (Dm ** -0.5)),
            "w_up": _w((lambda *s: torch.randn(*s, dtype=torch.bfloat16) * 0.8)(Dm, Df) * (Dm ** -0.5)),
            "w_down": _w((lambda *s: torch.randn(*s, dtype=torch.bfloat16) * 0.8)(Df, Dm) * (Df ** -0.5)),
        }
    _B_in = _B_setup()

    return {
        "A_u": _A_in["u"],
        "A_log_A_real": _A_in["log_A_real"],
        "A_A_imag": _A_in["A_imag"],
        "A_C_real": _A_in["C_real"],
        "A_C_imag": _A_in["C_imag"],
        "A_log_dt": _A_in["log_dt"],
        "A_D_skip": _A_in["D_skip"],
        "B_x": _B_in["x"],
        "B_w_gate": _B_in["w_gate"],
        "B_w_up": _B_in["w_up"],
        "B_w_down": _B_in["w_down"],
    }

def reference(A_u, A_log_A_real, A_A_imag, A_C_real, A_C_imag, A_log_dt, A_D_skip, B_x, B_w_gate, B_w_up, B_w_down):
    def _A_ref(u, log_A_real, A_imag, C_real, C_imag, log_dt, D_skip):
        L = u.shape[1]
        dt = torch.exp(log_dt)
        A = -torch.exp(log_A_real) + 1j * A_imag
        C = (C_real + 1j * C_imag) * dt[:, None]
        pos = (lambda x, dt: x.to(dt))(torch.arange(L), log_dt.dtype)
        P = torch.exp((A * dt[:, None])[:, :, None] * pos[None, None, :])
        K = 2.0 * torch.einsum("dn,dnl->dl", C, P).real
        L2 = 2 * L
        u_t = (lambda x, *d: x.permute(*d))(u, 0, 2, 1)
        Kf = (lambda x, *a, **k: torch.fft.rfft(x.float(), *a, **k))(K, L2)
        Uf = (lambda x, *a, **k: torch.fft.rfft(x.float(), *a, **k))(u_t, L2)
        y = (lambda x, *a, **k: torch.fft.irfft(x, *a, **k).to(torch.bfloat16))(Uf * Kf[None, :, :], L2)[:, :, :L]
        y = (lambda x, *d: x.permute(*d))(y, 0, 2, 1)
        return y + u * D_skip[None, None, :]

    def _B_ref(x, w_gate, w_up, w_down):
        g = torch.einsum("bsd,df->bsf", x, w_gate)
        u = torch.einsum("bsd,df->bsf", x, w_up)
        h = _gelu(g) * u
        return torch.einsum("bsf,fd->bsd", h, w_down)

    x = A_u
    x = x + _A_ref(_layernorm(x, axis=-1), A_log_A_real, A_A_imag, A_C_real, A_C_imag, A_log_dt, A_D_skip)
    x = x + _B_ref(_layernorm(x, axis=-1), B_w_gate, B_w_up, B_w_down)
    x = x + _A_ref(_layernorm(x, axis=-1), A_log_A_real, A_A_imag, A_C_real, A_C_imag, A_log_dt, A_D_skip)
    x = x + _B_ref(_layernorm(x, axis=-1), B_w_gate, B_w_up, B_w_down)
    return x
```

```python
import hazard
HEADER = """.amdgcn_target "amdgcn-amd-amdhsa--gfx950"
.text
"""
class K:
    def __init__(self, name, grid, block, lds=0, vgpr=256, sgpr=102, accum=None, agpr=0, fix=True):
        self.name = name; self.grid = grid; self.block = block; self.lds = lds
        self.vgpr = vgpr; self.sgpr = sgpr; self.accum = accum; self.agpr = agpr
        self.lines = []
        self._lab = 0; self.fix = fix
        self.nv = 0; self.ns = 0; self.na = 0
        self.vm = []
        self.lg = []
    def __call__(self, s):
        for ln in s.split("\n"):
            ln = ln.strip()
            if ln: self.lines.append("    " + ln if not ln.endswith(":") else ln)
    def label(self, base="L"):
        self._lab += 1
        return f"{self.name}_{base}{self._lab}"
    def v(self, n=1, al=None):
        al = al or (1 if n == 1 else 2 if n < 4 else 4)
        self.nv = (self.nv + al - 1) // al * al
        r = self.nv; self.nv += n; return r
    def a(self, n=1, al=None):
        al = al or (1 if n == 1 else 2 if n < 4 else 4)
        self.na = (self.na + al - 1) // al * al
        r = self.na; self.na += n; return r
    def s(self, n=1, al=None):
        al = al or (1 if n == 1 else 2 if n < 4 else 4)
        self.ns = (self.ns + al - 1) // al * al
        r = self.ns; self.ns += n; return r
    def vmem(self, instr, tag=None):
        self(instr); self.vm.append(tag)
    def wait_vm(self, tag):
        idx = max(i for i, t in enumerate(self.vm) if t == tag) if tag in self.vm else -1
        if idx < 0: return
        n = len(self.vm) - 1 - idx
        assert n <= 63, n
        self(f"s_waitcnt vmcnt({n})")
        self.vm = self.vm[idx + 1:]
    def wait_vm_all(self):
        self("s_waitcnt vmcnt(0)"); self.vm = []
    def lds_op(self, instr, tag=None):
        self(instr); self.lg.append(tag)
    def wait_lg(self, tag):
        idx = max(i for i, t in enumerate(self.lg) if t == tag) if tag in self.lg else -1
        if idx < 0: return
        n = len(self.lg) - 1 - idx
        if n > 15: n = 15
        self(f"s_waitcnt lgkmcnt({n})")
        self.lg = self.lg[len(self.lg) - n:] if n else []
    def wait_lg_all(self):
        self("s_waitcnt lgkmcnt(0)"); self.lg = []
    def srd(self, d, base, off, size):
        if off == 0:
            self(f"s_mov_b32 s{d}, s{base}\ns_mov_b32 s{d+1}, s{base+1}")
        else:
            o = off if isinstance(off, str) else hex(off)
            self(f"s_add_u32 s{d}, s{base}, {o}\ns_addc_u32 s{d+1}, s{base+1}, 0")
        sz = size if isinstance(size, str) else hex(size)
        self(f"s_mov_b32 s{d+2}, {sz}\ns_mov_b32 s{d+3}, 0x20000")
    def text(self):
        out = [f".globl {self.name}", ".p2align 8", f".type {self.name},@function", f"{self.name}:"]
        lines = self.lines
        if self.fix:
            lines, n = hazard.fix(lines)
            self.inserted = n
        out += lines
        return "\n".join(out) + "\n"
    def desc(self):
        vg = self.vgpr if self.vgpr else self.nv
        ag = self.agpr if self.agpr is not None else self.na
        sg = self.sgpr if self.sgpr else self.ns
        assert vg <= 256 and ag <= 256 and sg <= 102, (vg, ag, sg)
        accum = (vg + 3) // 4 * 4
        nfv = accum + ag if ag else vg
        return f""".p2align 6
.amdhsa_kernel {self.name}
  .amdhsa_next_free_vgpr {nfv}
  .amdhsa_next_free_sgpr {sg}
  .amdhsa_accum_offset {accum}
  .amdhsa_group_segment_fixed_size 0
  .amdhsa_kernarg_size 112
  .amdhsa_user_sgpr_count 2
  .amdhsa_user_sgpr_kernarg_segment_ptr 1
  .amdhsa_system_sgpr_workgroup_id_x 1
  .amdhsa_float_denorm_mode_32 3
  .amdhsa_float_denorm_mode_16_64 3
.end_amdhsa_kernel
"""
def vr(b, n=1): return f"v{b}" if n == 1 else f"v[{b}:{b+n-1}]"
def ar(b, n=1): return f"a{b}" if n == 1 else f"a[{b}:{b+n-1}]"
def sr(b, n=1): return f"s{b}" if n == 1 else f"s[{b}:{b+n-1}]"
def f32(x):
    import struct
    return hex(struct.unpack("<I", struct.pack("<f", x))[0])
def emit(path, kernels, order, comment=""):
    s = ""
    for ln in comment.split("\n"):
        if ln.strip(): s += "; " + ln.rstrip() + "\n"
    for k in order:
        g, b = k.grid, k.block
        s += f"; @launch kernel={k.name} grid=({g},1,1) block=({b},1,1) lds={k.lds}\n"
    s += HEADER
    for k in kernels: s += k.text()
    s += '.section .rodata,"a"\n'
    for k in kernels: s += k.desc()
    open(path, "w").write(s)
```

```python
import re
REG = re.compile(r'\b([vas])(\d+)\b|\b([vas])\[(\d+):(\d+)\]|\b(vcc|exec|m0|scc)\b')
TRANS = ("v_exp_f32","v_log_f32","v_rcp_f32","v_rsq_f32","v_sqrt_f32","v_sin_f32","v_cos_f32","v_exp_f16","v_log_f16","v_rcp_f16","v_rsq_f16","v_sqrt_f16","v_sin_f16","v_cos_f16","v_rcp_iflag_f32")
def regs(op):
    out = []
    for m in REG.finditer(op):
        if m.group(1): out.append((m.group(1), int(m.group(2))))
        elif m.group(3): out += [(m.group(3), i) for i in range(int(m.group(4)), int(m.group(5)) + 1)]
        else: out.append((m.group(6), 0))
    return out
def split_ops(rest):
    ops = []; depth = 0; cur = ""
    for ch in rest:
        if ch == "[": depth += 1
        if ch == "]": depth -= 1
        if ch == "," and depth == 0: ops.append(cur.strip()); cur = ""
        else: cur += ch
    if cur.strip(): ops.append(cur.strip())
    return ops
class I: pass
def parse(line):
    s = line.split(";")[0].strip()
    if not s or s.endswith(":") or s.startswith("."): return None
    p = s.split(None, 1); op = p[0]; rest = p[1] if len(p) > 1 else ""
    ops = split_ops(rest)
    mods = ""
    if ops:
        last = ops[-1].split(None, 1)
        ops[-1] = last[0]; mods = last[1] if len(last) > 1 else ""
    i = I(); i.op = op; i.mods = mods; i.w = []; i.r = []; i.kind = "other"; i.states = 1
    base = op.replace("_e32", "").replace("_e64", "").replace("_dpp", "").replace("_sdwa", "")
    i.base = base
    i.dpp = "_dpp" in op or any(x in mods for x in ("row_", "quad_perm", "wave_"))
    if op == "s_nop": i.states = int(ops[0], 0) + 1; i.kind = "salu"; return i
    if op.startswith("v_mfma"):
        i.kind = "mfma"; i.w = regs(ops[0]); i.a = regs(ops[1]); i.b = regs(ops[2]); i.c = regs(ops[3]); i.r = i.a + i.b + i.c
        i.passes = 8 if "32x32x16" in op else 4 if "16x16x32" in op else 8 if "16x16x4_f32" in op else 16
        i.sgemm = op.endswith("_f32") and ("x4_f32" in op or "x2_f32" in op)
        return i
    if op.startswith("v_"):
        i.kind = "valu"
        if base.startswith("v_cmp"):
            i.w = regs(ops[0]); i.r = sum((regs(o) for o in ops[1:]), [])
        elif base.startswith("v_permlane") and "swap" in base:
            i.w = regs(ops[0]) + regs(ops[1]); i.r = list(i.w); i.perm = True
        elif base in ("v_add_co_u32", "v_sub_co_u32", "v_addc_co_u32", "v_subb_co_u32", "v_subrev_co_u32", "v_mad_u64_u32", "v_div_scale_f32"):
            i.w = regs(ops[0]) + regs(ops[1]); i.r = sum((regs(o) for o in ops[2:]), [])
        else:
            i.w = regs(ops[0]); i.r = sum((regs(o) for o in ops[1:]), [])
            if base in ("v_fmac_f32", "v_dot2c_f32_bf16", "v_pk_fmac_f16", "v_fmac_f16", "v_dot2c_f32_f16") or i.dpp or base == "v_writelane_b32": i.r += i.w
        i.trans = base in TRANS
        i.dl = base.startswith("v_dot")
        i.rl = base in ("v_readfirstlane_b32", "v_readlane_b32")
        return i
    if op.startswith("ds_"):
        i.kind = "ds"
        if "read" in op or "permute" in op or "swizzle" in op or "rtn" in op:
            i.w = regs(ops[0]); i.r = sum((regs(o) for o in ops[1:]), [])
        else: i.r = sum((regs(o) for o in ops), [])
        return i
    if op.startswith(("buffer_", "global_")):
        i.kind = "vmem"; i.lds = bool(re.search(r'\blds\b', mods)) or "_lds_" in op
        if "load" in op and not i.lds:
            i.w = regs(ops[0]); i.r = sum((regs(o) for o in ops[1:]), [])
        else:
            i.r = sum((regs(o) for o in ops), [])
            if "atomic" in op and "sc0" in mods: i.w = regs(ops[0])
        if i.lds: i.r.append(("m0", 0))
        i.wide = ("store" in op and ("x3" in op or "x4" in op))
        if i.wide: i.data = regs(ops[0]) if op.startswith("buffer_") else regs(ops[1])
        return i
    if op.startswith("s_"):
        i.kind = "salu"
        if ops and not op.startswith(("s_cmp", "s_cbranch", "s_branch", "s_waitcnt", "s_barrier", "s_endpgm", "s_sleep", "s_setprio", "s_bitcmp")):
            i.w = regs(ops[0]); i.r = sum((regs(o) for o in ops[1:]), [])
        else: i.r = sum((regs(o) for o in ops), [])
        return i
    return i
def need(p, c):
    n = 0
    pw = set(p.w); cr = set(c.r); cw = set(c.w)
    if p.kind == "valu":
        vw = {x for x in pw if x[0] in "va"}; sw = {x for x in pw if x[0] in ("s", "vcc")}
        if c.kind == "mfma" and vw & cr: n = max(n, 3 if p.dl else 2)
        if c.kind == "valu":
            if vw & cr:
                if p.trans and not c.trans: n = max(n, 1)
                if c.dpp: n = max(n, 2)
                if getattr(c, "perm", False): n = max(n, 2)
                if c.rl: n = max(n, 1)
            if p.dl and (vw & (cr | cw)):
                same_c_only = (c.base == p.base) and not (vw & set(c.r[:-len(c.w)] if c.base.endswith("c_f32_bf16") else c.r[:-1]))
                if not same_c_only: n = max(n, 3)
            if sw & cr: n = max(n, 4 if c.base in ("v_readlane_b32", "v_writelane_b32") else 2)
        if p.dl and c.kind in ("vmem", "ds") and vw & cr: n = max(n, 3)
        if c.kind == "vmem" and sw & cr: n = max(n, 5)
        if c.kind == "salu" and sw & cr: n = max(n, 1)
    if p.kind == "mfma":
        P = p.passes
        big = (P + 2 if p.sgemm else P + 4)
        if c.kind == "mfma":
            if pw & (set(c.a) | set(c.b)): n = max(n, big)
            if pw & set(c.c):
                if c.c == p.w and c.passes == p.passes: n = max(n, 0)
                else: n = max(n, P + 2)
            elif pw & cw: n = max(n, P + 2)
        elif c.kind in ("valu", "vmem", "ds"):
            if pw & (cr | cw): n = max(n, big)
            if c.kind == "valu" and set(p.c) & cw: n = max(n, P - 1)
    if p.kind == "salu" and ("m0", 0) in pw and c.kind == "vmem" and getattr(c, "lds", False): n = max(n, 1)
    if p.kind == "vmem" and getattr(p, "wide", False) and set(p.data) & cw: n = max(n, 2 if c.kind in ("valu", "mfma") else 1)
    return n
def fix(lines, verbose=False):
    out = []; hist = []
    pos = 0; inserted = 0
    for ln in lines:
        c = parse(ln)
        if c is None: out.append(ln); continue
        req = 0
        for p, ppos in reversed(hist):
            dist = pos - ppos
            if dist >= 20: break
            n = need(p, c)
            if n > dist: req = max(req, n - dist)
        while req > 0:
            k = min(req, 16)
            out.append(f"    s_nop {k-1}"); pos += k; req -= k; inserted += k
        out.append(ln)
        pos += c.states
        hist.append((c, pos))
        if len(hist) > 40: hist.pop(0)
    return out, inserted
```

```python
from asmgen import *
from layout import *

def ln_finalize_pairs(k, S1, S2, M, Rr, n, tmp, s_inv, s_eps):
    for i in range(0, n, 2):
        k(f"v_pk_mul_f32 {vr(S1+i,2)}, {vr(S1+i,2)}, {sr(s_inv,2)}")
    for i in range(0, n, 2):
        k(f"v_pk_mul_f32 {vr(S2+i,2)}, {vr(S2+i,2)}, {sr(s_inv,2)}")
    for i in range(0, n, 2):
        k(f"v_pk_fma_f32 {vr(S2+i,2)}, {vr(S1+i,2)}, {vr(S1+i,2)}, {vr(S2+i,2)} neg_lo:[1,0,0] neg_hi:[1,0,0]")
    for i in range(0, n, 2):
        k(f"v_cvt_pk_bf16_f32 v{tmp+i}, -v{S1+i}, -v{S1+i+1}")
        k(f"v_cvt_pk_bf16_f32 v{tmp+i+1}, v{S2+i}, v{S2+i+1}")
    for i in range(0, n, 2):
        k(f"v_lshlrev_b32 v{M+i}, 16, v{tmp+i}")
        k(f"v_and_b32 v{M+i+1}, 0xffff0000, v{tmp+i}")
        k(f"v_lshlrev_b32 v{Rr+i}, 16, v{tmp+i+1}")
        k(f"v_and_b32 v{Rr+i+1}, 0xffff0000, v{tmp+i+1}")
    for i in range(0, n, 2):
        k(f"v_max_f32 v{Rr+i}, 0, v{Rr+i}")
        k(f"v_max_f32 v{Rr+i+1}, 0, v{Rr+i+1}")
    for i in range(0, n, 2):
        k(f"v_pk_add_f32 {vr(Rr+i,2)}, {vr(Rr+i,2)}, {sr(s_eps,2)}")
    for i in range(0, n, 2):
        k(f"v_cvt_pk_bf16_f32 v{tmp+i}, v{Rr+i}, v{Rr+i+1}")
    for i in range(0, n, 2):
        k(f"v_lshlrev_b32 v{Rr+i}, 16, v{tmp+i}")
        k(f"v_and_b32 v{Rr+i+1}, 0xffff0000, v{tmp+i}")
    for i in range(n):
        k(f"v_sqrt_f32 v{Rr+i}, v{Rr+i}")
    for i in range(0, n, 2):
        k(f"v_cvt_pk_bf16_f32 v{tmp+i}, v{Rr+i}, v{Rr+i+1}")
    for i in range(0, n, 2):
        k(f"v_lshlrev_b32 v{Rr+i}, 16, v{tmp+i}")
        k(f"v_and_b32 v{Rr+i+1}, 0xffff0000, v{tmp+i}")
    for i in range(n):
        k(f"v_rcp_f32 v{Rr+i}, v{Rr+i}")

class Interleaver:
    def __init__(self, k): self.k = k; self.q = []
    def add(self, fn): self.q.append(fn)
    def pop(self, n=1):
        for _ in range(n):
            if self.q: self.q.pop(0)()
    def flush(self):
        while self.q: self.q.pop(0)()

def make_conv(name, XT, ST, XB, exact=True, pre=12):
    k = K(name, 256, 256, vgpr=None, sgpr=None, agpr=None)
    UB = 4608
    L_P = 2 * UB
    k.lds = L_P + 4 * 8 * 1152
    k.ns = 3; k.nv = 1
    lane = k.v(); sw = k.s()
    WS = k.s(2); pD = k.s(2)
    rX, rS, rK, rO = [k.s(4) for _ in range(4)]
    st0, st1, sc, sp, sko, sD = [k.s() for _ in range(6)]
    sinv, seps, sD0, sD1 = [k.s(2) for _ in range(4)]
    t0, t1, t2 = k.v(), k.v(), k.v()
    vo16, vo32, vko, vbo, vpw, vpr, vout = [k.v() for _ in range(7)]
    X = k.v(8, 4); S1 = k.v(8, 4); S2 = k.v(8, 4); tmp = k.v(8, 4)
    XF = k.v(16, 4); U = k.v(8, 4); T = k.v(16, 4)
    acc = k.v(32, 4)
    Bf = k.v(128, 4)
    Af = k.a(128, 4)
    k(f"""
    s_cmp_ge_u32 s2, 256
    s_cbranch_scc1 {name}_end
    s_load_dwordx2 s[{WS}:{WS+1}], s[0:1], 104
    s_load_dwordx2 s[{pD}:{pD+1}], s[0:1], 48
    v_and_b32 v{lane}, 63, v0
    v_lshrrev_b32 v{t0}, 6, v0
    v_readfirstlane_b32 s{sw}, v{t0}
    v_lshlrev_b32 v{vo16}, 4, v0
    v_lshlrev_b32 v{vo32}, 5, v0
    v_and_b32 v{t0}, 14, v{lane}
    v_lshrrev_b32 v{t1}, 4, v{lane}            ; q
    v_lshl_add_u32 v{t0}, v{t1}, 3, v{t0}
    v_sub_u32 v{t0}, 38, v{t0}
    v_and_b32 v{t2}, 1, v{lane}
    v_xor_b32 v{t2}, 1, v{t2}
    v_mul_u32_u24 v{t2}, {KR_CP}, v{t2}
    v_lshl_add_u32 v{vko}, v{t0}, 1, v{t2}
    s_lshr_b32 s{sc}, s{sw}, 1
    s_and_b32 s{sp}, s{sw}, 1
    s_lshl_b32 s{st0}, s2, 1
    s_add_u32 s{st0}, s{st0}, s{sc}
    s_mul_i32 s{sko}, s{st0}, {KR_CH}
    s_lshl_b32 s{st1}, s{sp}, 6
    s_sub_u32 s{sko}, s{sko}, s{st1}
    s_add_u32 s{sko}, s{sko}, 64
    s_lshl_b32 s{st0}, s2, 13
    s_lshl_b32 s{st1}, s2, 2
    s_waitcnt lgkmcnt(0)
    s_load_dword s{sD}, s[{pD}:{pD+1}], s{st1}
    """)
    k.srd(rS, WS, ST, 0x4000)
    k.vmem(f"buffer_load_dwordx4 {vr(S1,4)}, v{vo32}, s[{rS}:{rS+3}], 0 offen", "st")
    k.vmem(f"buffer_load_dwordx4 {vr(S1+4,4)}, v{vo32}, s[{rS}:{rS+3}], 0 offen offset:16", "st")
    k(f"s_mov_b32 s{st1}, 0x2000")
    k.vmem(f"buffer_load_dwordx4 {vr(S2,4)}, v{vo32}, s[{rS}:{rS+3}], s{st1} offen", "st")
    k.vmem(f"buffer_load_dwordx4 {vr(S2+4,4)}, v{vo32}, s[{rS}:{rS+3}], s{st1} offen offset:16", "st")
    k.srd(rX, WS, XT, 2097152)
    k.vmem(f"buffer_load_dwordx4 {vr(X,4)}, v{vo16}, s[{rX}:{rX+3}], s{st0} offen", "x")
    k(f"s_add_u32 s{st0}, s{st0}, 4096")
    k.vmem(f"buffer_load_dwordx4 {vr(X+4,4)}, v{vo16}, s[{rX}:{rX+3}], s{st0} offen", "x")
    k.srd(rK, WS, KR, 512 * KR_CH)
    def kload(a):
        k.vmem(f"buffer_load_dwordx4 {ar(Af+4*a,4)}, v{vko}, s[{rK}:{rK+3}], s{sko} offen offset:{64*(62-2*a)}", ("k", a))
    nk = 0
    for a in range(pre): kload(a); nk += 1
    k.srd(rO, WS, XB, XB_SZ)
    k(f"""
    v_mov_b32 v{tmp}, 0
    v_mov_b32 v{tmp+1}, 0
    v_mov_b32 v{tmp+2}, 0
    v_mov_b32 v{tmp+3}, 0
    v_lshrrev_b32 v{t0}, 5, v{lane}
    v_mul_u32_u24 v{t0}, {UB - 512}, v{t0}
    v_lshl_add_u32 v{t0}, v{lane}, 4, v{t0}
    ds_write_b128 v{t0}, {vr(tmp,4)}
    v_and_b32 v{t0}, 15, v{lane}
    v_lshlrev_b32 v{t0}, 5, v{t0}
    v_lshlrev_b32 v{t2}, 4, v{t1}
    v_sub_u32 v{vbo}, v{t0}, v{t2}
    s_mul_i32 s{st0}, s{sc}, {UB}
    s_add_u32 s{st0}, s{st0}, 144
    s_lshl_b32 s{st1}, s{sp}, 6
    s_sub_u32 s{st0}, s{st0}, s{st1}
    v_add_u32 v{vbo}, s{st0}, v{vbo}
    s_mul_i32 s{st0}, s{sw}, 9216
    s_add_u32 s{st0}, s{st0}, {L_P}
    v_lshrrev_b32 v{t0}, 5, v{lane}
    v_lshlrev_b32 v{t0}, 7, v{t0}
    v_lshl_add_u32 v{t0}, v{lane}, 4, v{t0}
    v_add_u32 v{vpw}, s{st0}, v{t0}
    v_lshrrev_b32 v{t0}, 5, v0
    v_mul_u32_u24 v{t0}, 1152, v{t0}
    v_and_b32 v{t2}, 1, v0
    v_mul_u32_u24 v{t2}, 640, v{t2}
    v_add_u32 v{t0}, v{t0}, v{t2}
    v_bfe_u32 v{t2}, v0, 1, 4
    v_lshl_add_u32 v{vpr}, v{t2}, 4, v{t0}
    ; out offset: rb = t/12 ; rb*98304 + (t%12)*16
    v_mul_u32_u24 v{t0}, 171, v0
    v_lshrrev_b32 v{t0}, 11, v{t0}
    v_mul_u32_u24 v{t0}, {98304 - 192}, v{t0}
    v_add_u32 v{vout}, v{t0}, v{vo16}
    s_mov_b32 s{sinv}, {f32(1/512)}
    s_mov_b32 s{sinv+1}, {f32(1/512)}
    s_mov_b32 s{seps}, {f32(1e-5)}
    s_mov_b32 s{seps+1}, {f32(1e-5)}
    s_waitcnt lgkmcnt(0)
    s_lshl_b32 s{sD0}, s{sD}, 16
    s_mov_b32 s{sD0+1}, s{sD0}
    s_and_b32 s{sD1}, s{sD}, 0xffff0000
    s_mov_b32 s{sD1+1}, s{sD1}
    """)
    k.wait_vm("st")
    mark = len(k.lines)
    ln_finalize_pairs(k, S1, S2, S1, S2, 8, tmp, sinv, seps)
    body = k.lines[mark:]; del k.lines[mark:]
    for i, ln in enumerate(body):
        k.lines.append(ln)
        if i % 14 == 13 and nk < 32: kload(nk); nk += 1
    k.wait_vm("x")
    mark = len(k.lines)
    for c in range(2):
        for j in range(4):
            xf = XF + c * 8 + 2 * j
            k(f"v_lshlrev_b32 v{xf}, 16, v{X+c*4+j}")
            k(f"v_and_b32 v{xf+1}, 0xffff0000, v{X+c*4+j}")
        for j in range(4):
            k(f"v_pk_add_f32 {vr(T+2*j,2)}, {vr(XF+c*8+2*j,2)}, {vr(S1+2*j,2)}")
        if exact:
            for j in range(4): k(f"v_cvt_pk_bf16_f32 v{tmp+j}, v{T+2*j}, v{T+2*j+1}")
            for j in range(4):
                k(f"v_lshlrev_b32 v{T+2*j}, 16, v{tmp+j}")
                k(f"v_and_b32 v{T+2*j+1}, 0xffff0000, v{tmp+j}")
        for j in range(4):
            k(f"v_pk_mul_f32 {vr(T+2*j,2)}, {vr(T+2*j,2)}, {vr(S2+2*j,2)}")
        for j in range(4): k(f"v_cvt_pk_bf16_f32 v{U+c*4+j}, v{T+2*j}, v{T+2*j+1}")
        k(f"ds_write_b128 v{vo16}, {vr(U+c*4,4)} offset:{c*UB+512}")
    body = k.lines[mark:]; del k.lines[mark:]
    for i, ln in enumerate(body):
        k.lines.append(ln)
        if i % 14 == 13 and nk < 32: kload(nk); nk += 1
    k("s_waitcnt lgkmcnt(0)\ns_barrier")
    order = []
    for a in range(4):
        for t in range(7, -1, -1):
            order.append(4 * t - a + 3)
    assert sorted(order) == list(range(32))
    nb = 0
    def bread():
        nonlocal nb
        b = order[nb]; nb += 1
        k.lds_op(f"ds_read_b128 {vr(Bf+4*b,4)}, v{vbo} offset:{128*b}", ("b", b))
    for _ in range(8): bread()
    fill = Interleaver(k)
    for c in range(2):
        sDc = sD0 if c == 0 else sD1
        for j in range(4):
            tt = T + c * 8 + 2 * j; u = U + c * 4 + j; xf = XF + c * 8 + 2 * j
            fill.add(lambda tt=tt, u=u: k(f"v_lshlrev_b32 v{tt}, 16, v{u}"))
            fill.add(lambda tt=tt, u=u: k(f"v_and_b32 v{tt+1}, 0xffff0000, v{u}"))
            if exact:
                fill.add(lambda tt=tt, sDc=sDc: k(f"v_mul_f32 v{tt}, s{sDc}, v{tt}"))
                fill.add(lambda tt=tt, sDc=sDc: k(f"v_mul_f32 v{tt+1}, s{sDc}, v{tt+1}"))
                fill.add(lambda tt=tt, u=u: k(f"v_cvt_pk_bf16_f32 v{u}, v{tt}, v{tt+1}"))
                fill.add(lambda tt=tt, u=u: k(f"v_lshlrev_b32 v{tt}, 16, v{u}"))
                fill.add(lambda tt=tt, u=u: k(f"v_and_b32 v{tt+1}, 0xffff0000, v{u}"))
            else:
                fill.add(lambda tt=tt, sDc=sDc, xf=xf: k(f"v_fma_f32 v{tt}, s{sDc}, v{tt}, v{xf}"))
                fill.add(lambda tt=tt, sDc=sDc, xf=xf: k(f"v_fma_f32 v{tt+1}, s{sDc}, v{tt+1}, v{xf+1}"))
    nm = 0
    pend = []
    for a in range(32):
        while nk <= a: kload(nk); nk += 1
        k.wait_vm(("k", a))
        for t in range(7, -1, -1):
            b = 4 * t - a + 3
            if b < 0: continue
            if a < 4: k.wait_lg(("b", b))
            c = "0" if a == 0 else vr(acc + 4 * t, 4)
            k(f"v_mfma_f32_16x16x32_bf16 {vr(acc+4*t,4)}, {ar(Af+4*a,4)}, {vr(Bf+4*b,4)}, {c}")
            nm += 1
            if b == 0: pend.append((nm + 4, t))
            if nb < 32: bread()
            elif nm % 4 == 0 and nk < 32: kload(nk); nk += 1
            elif pend and pend[0][0] <= nm:
                tt = pend.pop(0)[1]
                k.lds_op(f"ds_write_b128 v{vpw}, {vr(acc+4*tt,4)} offset:{1152*tt}", "pw")
            else: fill.pop(1)
    fill.flush()
    for _, tt in pend:
        k.lds_op(f"ds_write_b128 v{vpw}, {vr(acc+4*tt,4)} offset:{1152*tt}", "pw")
    k.wait_lg_all()
    k("s_barrier")
    Y = Bf
    for c in range(2):
        for p in range(2):
            for h in range(2):
                k.lds_op(f"ds_read_b128 {vr(Y+c*16+p*8+h*4,4)}, v{vpr} offset:{L_P + (2*c+p)*9216 + h*256}", ("y", c))
    k(f"s_mul_i32 s{st0}, s2, 384")
    for c in range(2):
        k.wait_lg(("y", c))
        y = Y + c * 16
        for j in range(4): k(f"v_pk_add_f32 {vr(y+2*j,2)}, {vr(y+2*j,2)}, {vr(y+8+2*j,2)}")
        if exact:
            for rnd_add in (T + c * 8, XF + c * 8):
                for j in range(4): k(f"v_cvt_pk_bf16_f32 v{tmp+j}, v{y+2*j}, v{y+2*j+1}")
                for j in range(4):
                    k(f"v_lshlrev_b32 v{y+2*j}, 16, v{tmp+j}")
                    k(f"v_and_b32 v{y+2*j+1}, 0xffff0000, v{tmp+j}")
                for j in range(4): k(f"v_pk_add_f32 {vr(y+2*j,2)}, {vr(y+2*j,2)}, {vr(rnd_add+2*j,2)}")
        else:
            for j in range(4): k(f"v_pk_add_f32 {vr(y+2*j,2)}, {vr(y+2*j,2)}, {vr(T+c*8+2*j,2)}")
        for j in range(4): k(f"v_cvt_pk_bf16_f32 v{X+c*4+j}, v{y+2*j}, v{y+2*j+1}")
        k(f"buffer_store_dwordx4 {vr(X+c*4,4)}, v{vout}, s[{rO}:{rO+3}], s{st0} offen offset:{192*c}")
    k(f"{name}_end:\ns_endpgm")
    return k
```

```python
from asmgen import *
from layout import *
import math

def make_g1(name, XB, D=6, RB=(0, 2, 5, 8, 11)):
    k = K(name, 248, 512, vgpr=None, sgpr=None, agpr=None)
    L_ST = 98304
    k.lds = L_ST + 1024
    k.ns = 3; k.nv = 1
    lane = k.v(); sw = k.s()
    WS = k.s(2)
    rX, rW, rH = [k.s(4) for _ in range(3)]
    st0, st1, stl, sg, srb, su, swo, sone = [k.s() for _ in range(8)]
    sinv, seps = k.s(2), k.s(2)
    t0, t1 = k.v(), k.v()
    vo16, vtr0, vtr1, vst = [k.v() for _ in range(4)]
    SS = k.v(4, 4); SQ = k.v(4, 4); tmp = k.v(8, 4)
    XF = k.v(24, 4)
    acc = k.v(48, 4)
    Wf = k.a(132, 4)
    k(f"""
    s_cmp_ge_u32 s2, 248
    s_cbranch_scc1 {name}_end
    s_load_dwordx2 s[{WS}:{WS+1}], s[0:1], 104
    s_and_b32 s{st0}, s2, 7
    s_mul_i32 s{stl}, s{st0}, 31
    s_lshr_b32 s{st0}, s2, 3
    s_add_u32 s{stl}, s{stl}, s{st0}
    s_cmp_ge_u32 s{stl}, 242
    s_cbranch_scc1 {name}_end
    v_and_b32 v{lane}, 63, v0
    v_lshrrev_b32 v{t0}, 6, v0
    v_readfirstlane_b32 s{sw}, v{t0}
    v_lshlrev_b32 v{vo16}, 4, v{lane}
    s_cmp_ge_u32 s{stl}, 88
    s_cselect_b32 s{st0}, 88, 0
    s_cselect_b32 s{sg}, 4, 0
    s_sub_u32 s{st0}, s{stl}, s{st0}
    s_and_b32 s{st1}, s{st0}, 3
    s_add_u32 s{sg}, s{sg}, s{st1}
    s_lshr_b32 s{srb}, s{st0}, 2
    s_cmp_lt_u32 s{stl}, 176
    s_cbranch_scc1 {name}_dec
    s_sub_u32 s{st0}, s{stl}, 176
    s_mul_i32 s{srb}, s{st0}, 43
    s_lshr_b32 s{srb}, s{srb}, 7
    s_mul_i32 s{st1}, s{srb}, 3
    s_sub_u32 s{sg}, s{st0}, s{st1}
    s_add_u32 s{sg}, s{sg}, 8
    {name}_dec:
    s_lshl_b32 s{su}, s{sg}, 3
    s_add_u32 s{su}, s{su}, s{sw}
    s_mul_i32 s{swo}, s{su}, {33*1024}
    s_mul_i32 s{st0}, s{srb}, 98304
    s_add_u32 s{st0}, s{st0}, {XB}
    s_lshl_b32 m0, s{sw}, 10
    s_waitcnt lgkmcnt(0)
    """)
    k.srd(rX, WS, f"s{st0}", 98304)
    k.srd(rW, WS, W1F, W1F_SZ)
    avail = [8 * (r + 1) // 3 for r in RB]
    items = [(ks, 1, ("w", ks)) for ks in range(33)]
    prev_r, prev_av = -1, 0
    for R, av in zip(RB, avail):
        nj = prev_av - 1
        for r in range(prev_r + 1, R + 1):
            items.append((nj - 2 * (R - r), 0, ("x", r)))
        prev_r, prev_av = R, av
    items.sort(key=lambda x: (x[0], x[1], x[2][1]))
    xs = [it[2][1] for it in items if it[2][0] == "x"]; assert xs == sorted(xs)
    pos = 0
    def issue():
        nonlocal pos
        tag = items[pos][2]; pos += 1
        if tag[0] == "x":
            k.vmem(f"buffer_load_dwordx4 v{vo16}, s[{rX}:{rX+3}], m0 offen lds", tag)
            if tag[1] < 11: k("s_add_u32 m0, m0, 8192")
        else:
            ks = tag[1]
            k.vmem(f"buffer_load_dwordx4 {ar(Wf+4*ks,4)}, v{vo16}, s[{rW}:{rW+3}], s{swo} offen offset:{(ks%4)*1024}", tag)
            if ks % 4 == 3: k(f"s_add_u32 s{swo}, s{swo}, 4096")
    def issue_upto(t, maxn=99):
        n = 0
        while pos < len(items) and items[pos][0] <= t and n < maxn: issue(); n += 1
    issue_upto(D - 1)
    k.srd(rH, WS, HF, HF_SZ)
    k(f"""
    v_lshrrev_b32 v{t0}, 5, v{lane}
    v_lshlrev_b32 v{t0}, 3, v{t0}
    v_bfe_u32 v{t1}, v{lane}, 2, 2
    v_add_u32 v{t0}, v{t0}, v{t1}
    v_mul_u32_u24 v{vtr0}, 192, v{t0}
    v_bfe_u32 v{t1}, v{lane}, 4, 1
    v_lshl_add_u32 v{vtr0}, v{t1}, 5, v{vtr0}
    v_and_b32 v{t1}, 3, v{lane}
    v_lshl_add_u32 v{vtr0}, v{t1}, 3, v{vtr0}
    v_add_u32 v{vtr1}, {16*3072}, v{vtr0}
    v_and_b32 v{t1}, 31, v{lane}
    v_lshlrev_b32 v{vst}, 2, v{t1}
    v_add_u32 v{vst}, {L_ST}, v{vst}
    s_mov_b32 s{sone}, 0x3f803f80
    s_mov_b32 s{sinv}, {f32(1/512)}
    s_mov_b32 s{sinv+1}, {f32(1/512)}
    s_mov_b32 s{seps}, {f32(1e-5)}
    s_mov_b32 s{seps+1}, {f32(1e-5)}
    """)
    for j in range(4): k(f"v_mov_b32 v{SS+j}, 0\nv_mov_b32 v{SQ+j}, 0")
    k(f"v_add_u32 v{t0}, {L_ST}, v{vo16}")
    k(f"ds_write_b128 v{t0}, {vr(SS,4)}")
    nbar = 0
    def ensure(ks):
        nonlocal nbar
        while nbar < len(RB) and ks >= (avail[nbar - 1] if nbar else 0):
            k.wait_vm(("x", RB[nbar]))
            if nbar == 0: k("s_waitcnt lgkmcnt(0)")
            k("s_barrier")
            nbar += 1
    def reads(ks):
        base = vtr0 if ks < 16 else vtr1
        out = []
        for nt in range(3):
            for c in range(2):
                d = XF + (ks % 2) * 12 + nt * 4 + 2 * c
                out.append((f"ds_read_b64_tr_b16 {vr(d,2)}, v{base} offset:{(ks%16)*3072 + c*768 + nt*64}", ("f", ks, nt)))
        return out
    ensure(0)
    for ins, tag in reads(0): k.lds_op(ins, tag)
    for ks in range(32):
        nxt = []
        if ks + 1 < 32:
            ensure(ks + 1)
            nxt = reads(ks + 1)
        k.wait_vm(("w", ks))
        for nt in range(3):
            k.wait_lg(("f", ks, nt))
            c = "0" if ks == 0 else vr(acc + 16 * nt, 16)
            k(f"v_mfma_f32_32x32x16_bf16 {vr(acc+16*nt,16)}, {ar(Wf+4*ks,4)}, {vr(XF+(ks%2)*12+nt*4,4)}, {c}")
            for ins, tag in nxt[2 * nt: 2 * nt + 2]: k.lds_op(ins, tag)
            issue_upto(ks + D, 1)
        issue_upto(ks + D)
        lab = k.label("sk")
        k(f"s_cmp_lg_u32 s{sw}, {ks % 8}\ns_cbranch_scc1 {lab}")
        for j in range(4):
            for nt in range(3):
                x = XF + (ks % 2) * 12 + nt * 4 + j
                k(f"v_dot2c_f32_bf16 v{SS+nt}, s{sone}, v{x}")
                k(f"v_dot2c_f32_bf16 v{SQ+nt}, v{x}, v{x}")
        k(f"{lab}:")
    assert pos == len(items)
    k("s_nop 2")
    for nt in range(3):
        k(f"ds_add_f32 v{vst}, v{SS+nt} offset:{nt*128}")
        k(f"ds_add_f32 v{vst}, v{SQ+nt} offset:{384+nt*128}")
    k("s_waitcnt lgkmcnt(0)\ns_barrier")
    k(f"s_cmp_ge_u32 s{su}, 86\ns_cbranch_scc1 {name}_end")
    for nt in range(3):
        k(f"ds_read_b32 v{SS+nt}, v{vst} offset:{nt*128}")
        k(f"ds_read_b32 v{SQ+nt}, v{vst} offset:{384+nt*128}")
    MB = XF
    for nt in range(3): k(f"v_mov_b32 v{MB+4*nt+2}, 0\nv_mov_b32 v{MB+4*nt+3}, 0")
    k(f"""
    s_mul_i32 s{st0}, s{srb}, {3*86*1024}
    s_lshl_b32 s{st1}, s{su}, 10
    s_add_u32 s{st0}, s{st0}, s{st1}
    s_waitcnt lgkmcnt(0)
    """)
    for i in (0, 2): k(f"v_pk_mul_f32 {vr(SS+i,2)}, {vr(SS+i,2)}, {sr(sinv,2)}")
    for nt in range(3): k(f"v_cvt_pk_bf16_f32 v{MB+4*nt}, v{SS+nt}, v{SS+nt}")
    for nt in range(3): k(f"v_and_b32 v{MB+4*nt+1}, 0xffff, v{MB+4*nt}")
    for i in (0, 2): k(f"v_pk_mul_f32 {vr(SQ+i,2)}, {vr(SQ+i,2)}, {sr(sinv,2)}")
    k.wait_vm(("w", 32))
    for nt in range(3):
        k(f"v_mfma_f32_32x32x16_bf16 {vr(acc+16*nt,16)}, {ar(Wf+128,4)}, {vr(MB+4*nt,4)}, {vr(acc+16*nt,16)}")
    for i in (0, 2): k(f"v_pk_fma_f32 {vr(SQ+i,2)}, {vr(SS+i,2)}, {vr(SS+i,2)}, {vr(SQ+i,2)} neg_lo:[1,0,0] neg_hi:[1,0,0]")
    def rnd():
        for i in (0, 2): k(f"v_cvt_pk_bf16_f32 v{tmp+i}, v{SQ+i}, v{SQ+i+1}")
        k(f"v_lshlrev_b32 v{SQ}, 16, v{tmp}\nv_and_b32 v{SQ+1}, 0xffff0000, v{tmp}\nv_lshlrev_b32 v{SQ+2}, 16, v{tmp+2}")
    rnd()
    for nt in range(3): k(f"v_max_f32 v{SQ+nt}, 0, v{SQ+nt}")
    for i in (0, 2): k(f"v_pk_add_f32 {vr(SQ+i,2)}, {vr(SQ+i,2)}, {sr(seps,2)}")
    rnd()
    for nt in range(3): k(f"v_sqrt_f32 v{SQ+nt}, v{SQ+nt}")
    rnd()
    C0 = -2 * LOG2E * math.sqrt(2 / math.pi); C1 = C0 * 0.044715
    c0r = XF + 12; c1r = XF + 16; s2 = XF + 20
    for nt in range(3): k(f"v_rcp_f32 v{SS+nt}, v{SQ+nt}")
    for nt in range(3): k(f"v_mul_f32 v{s2+nt}, v{SQ+nt}, v{SQ+nt}")
    for nt in range(3): k(f"v_mul_f32 v{c0r+nt}, {f32(C0)}, v{SS+nt}")
    for nt in range(3): k(f"v_mul_f32 v{c1r+nt}, v{SS+nt}, v{SS+nt}")
    for nt in range(3): k(f"v_mul_f32 v{SQ+nt}, {f32(C1)}, v{SS+nt}")
    for nt in range(3): k(f"v_mul_f32 v{c1r+nt}, v{c1r+nt}, v{SQ+nt}")
    for nt in range(3):
        a = acc + 16 * nt
        for j in range(8): k(f"v_mul_f32 v{tmp+j}, v{a+j}, v{a+j}")
        for j in range(8): k(f"v_fma_f32 v{tmp+j}, v{tmp+j}, v{c1r+nt}, v{c0r+nt}")
        for j in range(8): k(f"v_mul_f32 v{tmp+j}, v{tmp+j}, v{a+j}")
        for j in range(8):
            k(f"v_exp_f32 v{tmp+j}, v{tmp+j}")
            k(f"v_mul_f32 v{a+j}, v{a+j}, v{a+8+j}")
        for j in range(8): k(f"v_fma_f32 v{tmp+j}, v{tmp+j}, v{s2+nt}, v{s2+nt}")
        for j in range(8): k(f"v_rcp_f32 v{tmp+j}, v{tmp+j}")
        for j in range(8): k(f"v_mul_f32 v{a+j}, v{a+j}, v{tmp+j}")
        for j in range(4): k(f"v_cvt_pk_bf16_f32 v{a+8+j}, v{a+2*j}, v{a+2*j+1}")
        k(f"buffer_store_dwordx4 {vr(a+8,4)}, v{vo16}, s[{rH}:{rH+3}], s{st0} offen")
        if nt < 2: k(f"s_add_u32 s{st0}, s{st0}, {86*1024}")
    k(f"{name}_end:\ns_endpgm")
    return k
```

```python
from asmgen import *
from layout import *

def make_g2(name, XB, final, XT=None, ST=None, RING=8, PRE=5):
    k = K(name, 256, 256, vgpr=None, sgpr=None, agpr=None)
    RS = 272
    SLAB = 64 * RS
    L_R = 4 * SLAB
    L_RI = L_R + 8192
    RIS = 144
    k.lds = L_R + (8192 + 64 * RIS if final else 0)
    k.ns = 3; k.nv = 1
    lane = k.v(); sw = k.s()
    WS = k.s(2); pO = k.s(2)
    rH, rW, rX, rO, rS = [k.s(4) for _ in range(5)]
    st0, st1, sa, sb, su, sbig = [k.s() for _ in range(6)]
    t0, t1, t2 = k.v(), k.v(), k.v()
    vo0, vo1, vpw, vpr, vres, vout = [k.v() for _ in range(6)]
    RES = k.v(8, 4)
    acc = k.v(64, 4)
    F = k.a(16 * RING, 4)
    NS = 22
    k(f"""
    s_cmp_ge_u32 s2, 256
    s_cbranch_scc1 {name}_end
    s_load_dwordx2 s[{WS}:{WS+1}], s[0:1], 104
    s_load_dwordx2 s[{pO}:{pO+1}], s[0:1], 88
    v_and_b32 v{lane}, 63, v0
    v_lshrrev_b32 v{t0}, 6, v0
    v_readfirstlane_b32 s{sw}, v{t0}
    v_lshlrev_b32 v{vo0}, 4, v{lane}
    v_add_u32 v{vo1}, {86*1024}, v{vo0}
    s_and_b32 s{st0}, s2, 7
    s_lshl_b32 s{sa}, s{st0}, 2
    s_bfe_u32 s{st0}, s2, 0x20003
    s_add_u32 s{sa}, s{sa}, s{st0}
    s_lshr_b32 s{sb}, s2, 5
    s_lshl_b32 s{su}, s{sw}, 10
    s_mul_i32 s{st0}, s{sa}, {2*86*1024}
    s_add_u32 s{st0}, s{st0}, {HF}
    s_mul_i32 s{st1}, s{sb}, {2*86*1024}
    s_add_u32 s{st1}, s{st1}, {W2F}
    ; residual address: lc = 8a + (lane&7); rb = lc/12; rb*98304 + (lc%12)*16 + row*192
    v_and_b32 v{t0}, 7, v{lane}
    v_lshl_add_u32 v{t0}, s{sa}, 3, v{t0}
    v_mul_u32_u24 v{t1}, 171, v{t0}
    v_lshrrev_b32 v{t1}, 11, v{t1}
    v_mul_u32_u24 v{t1}, {98304-192}, v{t1}
    v_lshl_add_u32 v{vres}, v{t0}, 4, v{t1}
    v_lshrrev_b32 v{t2}, 3, v{lane}
    v_mul_u32_u24 v{t1}, 192, v{t2}
    v_add_u32 v{vres}, v{vres}, v{t1}
    s_waitcnt lgkmcnt(0)
    """)
    k.srd(rH, WS, f"s{st0}", 2 * 86 * 1024)
    k.srd(rW, WS, f"s{st1}", 2 * 86 * 1024)
    k.srd(rX, WS, XB, XB_SZ)
    def loads(s):
        if s == NS - 1:
            k(f"s_cmp_ge_u32 s{sw}, 2\ns_cselect_b32 s{su}, 0x7000000, s{su}")
        f = F + 16 * (s % RING)
        k.vmem(f"buffer_load_dwordx4 {ar(f,4)}, v{vo0}, s[{rH}:{rH+3}], s{su} offen", ("f", s, 0))
        k.vmem(f"buffer_load_dwordx4 {ar(f+8,4)}, v{vo0}, s[{rW}:{rW+3}], s{su} offen", ("f", s, 1))
        k.vmem(f"buffer_load_dwordx4 {ar(f+12,4)}, v{vo1}, s[{rW}:{rW+3}], s{su} offen", ("f", s, 2))
        k.vmem(f"buffer_load_dwordx4 {ar(f+4,4)}, v{vo1}, s[{rH}:{rH+3}], s{su} offen", ("f", s, 3))
        if s < NS - 1: k(f"s_add_u32 s{su}, s{su}, 4096")
    loads(0)
    if not final:
        k(f"""
        s_lshl_b32 s{st0}, s{sb}, 3
        s_add_u32 s{st0}, s{st0}, s{sw}
        s_mul_i32 s{st0}, s{st0}, {8*192}
        s_add_u32 s{st1}, s{st0}, {32*192}
        """)
        k.vmem(f"buffer_load_dwordx4 {vr(RES,4)}, v{vres}, s[{rX}:{rX+3}], s{st0} offen", "res")
        k.vmem(f"buffer_load_dwordx4 {vr(RES+4,4)}, v{vres}, s[{rX}:{rX+3}], s{st1} offen", "res")
    else:
        k(f"""
        s_lshl_b32 s{st0}, s{sb}, 2
        s_add_u32 s{st0}, s{st0}, s{sw}
        s_mul_i32 s{st0}, s{st0}, {16*192}
        s_add_u32 s{st1}, s{st0}, {8*192}
        s_lshl_b32 s{sbig}, s{sw}, 11
        s_add_u32 m0, s{sbig}, {L_R}
        """)
        k.vmem(f"buffer_load_dwordx4 v{vres}, s[{rX}:{rX+3}], s{st0} offen lds", "res")
        k("s_add_u32 m0, m0, 1024")
        k.vmem(f"buffer_load_dwordx4 v{vres}, s[{rX}:{rX+3}], s{st1} offen lds", "res")
    for s in range(1, PRE): loads(s)
    k(f"""
    v_and_b32 v{t0}, 31, v{lane}
    v_mul_u32_u24 v{t0}, {RS}, v{t0}
    v_lshrrev_b32 v{t1}, 5, v{lane}
    v_lshl_add_u32 v{t0}, v{t1}, 4, v{t0}
    s_mul_i32 s{st0}, s{sw}, {SLAB}
    v_add_u32 v{vpw}, s{st0}, v{t0}
    v_lshrrev_b32 v{t2}, 3, v0                 ; 8w + lane>>3
    v_mul_u32_u24 v{t0}, {RS}, v{t2}
    v_and_b32 v{t1}, 7, v{lane}
    v_lshl_add_u32 v{vpr}, v{t1}, 5, v{t0}
    """)
    if not final:
        k.srd(rO, WS, XT, 2097152)
        k.srd(rS, WS, ST, 0x4000)
        k(f"""
        v_lshlrev_b32 v{t0}, 12, v{t2}
        v_lshl_add_u32 v{vout}, v{t1}, 4, v{t0}
        """)
    else:
        k.srd(rO, pO, 0, 2097152)
        k(f"""
        v_lshlrev_b32 v{t0}, 10, v{t2}
        v_lshl_add_u32 v{vout}, v{t1}, 4, v{t0}
        v_mul_u32_u24 v{t0}, {RIS}, v{t2}
        v_lshl_add_u32 v{RES}, v{t1}, 4, v{t0}
        v_add_u32 v{RES}, {L_RI}, v{RES}
        v_bfe_u32 v{t0}, v{lane}, 2, 2
        v_lshlrev_b32 v{t0}, 7, v{t0}
        v_lshrrev_b32 v{t1}, 4, v{lane}
        v_lshl_add_u32 v{t0}, v{t1}, 5, v{t0}
        v_and_b32 v{t1}, 3, v{lane}
        v_lshl_add_u32 v{t0}, v{t1}, 3, v{t0}
        s_add_u32 s{sbig}, s{sbig}, {L_R}
        v_add_u32 v{RES+1}, s{sbig}, v{t0}
        v_mul_u32_u24 v{t0}, {RIS}, v{lane}
        s_lshl_b32 s{st0}, s{sw}, 5
        s_add_u32 s{st0}, s{st0}, {L_RI}
        v_add_u32 v{RES+2}, s{st0}, v{t0}
        """)
        TR = k.v(8, 4)
    nl = PRE
    for s in range(NS):
        f = F + 16 * (s % RING)
        hA, hB, wA, wB = f, f + 4, f + 8, f + 12
        seq = [(hA, wA, 0, 0, 1), (hA, wB, 0, 1, 2), (hB, wB, 1, 1, 3), (hB, wA, 1, 0, 3)]
        for i, (h, w, lt, dt, need) in enumerate(seq):
            k.wait_vm(("f", s, need))
            ai = acc + 16 * (2 * lt + dt)
            c = "0" if s == 0 else vr(ai, 16)
            A_, B_ = (w, h) if final else (h, w)
            k(f"v_mfma_f32_32x32x16_bf16 {vr(ai,16)}, {ar(A_,4)}, {ar(B_,4)}, {c}")
        if nl < NS: loads(nl); nl += 1
        if s == 0 and nl < NS and nl < RING: pass
        if final and s == 1:
            for c in range(4): k.lds_op(f"ds_read_b64_tr_b16 {vr(TR+2*c,2)}, v{RES+1} offset:{c*512}", "tr")
        if final and s == 2:
            k.wait_lg_all()
            k(f"ds_write_b128 v{RES+2}, {vr(TR,4)}")
            k(f"ds_write_b128 v{RES+2}, {vr(TR+4,4)} offset:16")
    for lt, dt in ((0, 0), (0, 1), (1, 1), (1, 0)):
        ai = acc + 16 * (2 * lt + dt)
        rowt, colt = (lt, dt) if final else (dt, lt)
        for q in range(4):
            k(f"ds_write_b128 v{vpw}, {vr(ai+4*q,4)} offset:{rowt*32*RS + colt*128 + q*32}")
    k("s_waitcnt lgkmcnt(0)\ns_barrier")
    Y = acc
    for it in range(2):
        for sl in range(4):
            for h in range(2):
                k.lds_op(f"ds_read_b128 {vr(Y+it*32+sl*8+h*4,4)}, v{vpr} offset:{sl*SLAB + it*32*RS + h*16}", ("y", it, sl))
        if final:
            k.lds_op(f"ds_read_b128 {vr(TR+4*it,4)}, v{RES} offset:{it*32*RIS}", ("y", it, 4))
    if final:
        k(f"s_lshl_b32 s{st0}, s{sa}, 16\ns_lshl_b32 s{st1}, s{sb}, 7\ns_add_u32 s{st0}, s{st0}, s{st1}\ns_add_u32 s{st1}, s{st0}, {32*1024}")
        RR = TR
    else:
        k(f"s_lshl_b32 s{st0}, s{sb}, 18\ns_lshl_b32 s{st1}, s{sa}, 7\ns_add_u32 s{st0}, s{st0}, s{st1}\ns_add_u32 s{st1}, s{st0}, {32*4096}")
        RR = RES
    for it in range(2):
        y = Y + it * 32
        k.wait_lg(("y", it, 1))
        for j in range(4): k(f"v_pk_add_f32 {vr(y+2*j,2)}, {vr(y+2*j,2)}, {vr(y+8+2*j,2)}")
        k.wait_lg(("y", it, 4 if final else 3))
        for j in range(4): k(f"v_pk_add_f32 {vr(y+16+2*j,2)}, {vr(y+16+2*j,2)}, {vr(y+24+2*j,2)}")
        for j in range(4): k(f"v_pk_add_f32 {vr(y+2*j,2)}, {vr(y+2*j,2)}, {vr(y+16+2*j,2)}")
        for j in range(4): k(f"v_cvt_pk_bf16_f32 v{y+8+j}, v{y+2*j}, v{y+2*j+1}")
        for j in range(4):
            k(f"v_lshlrev_b32 v{y+16+2*j}, 16, v{RR+4*it+j}")
            k(f"v_and_b32 v{y+16+2*j+1}, 0xffff0000, v{RR+4*it+j}")
        for j in range(4):
            k(f"v_lshlrev_b32 v{y+2*j}, 16, v{y+8+j}")
            k(f"v_and_b32 v{y+2*j+1}, 0xffff0000, v{y+8+j}")
        for j in range(4): k(f"v_pk_add_f32 {vr(y+2*j,2)}, {vr(y+2*j,2)}, {vr(y+16+2*j,2)}")
        for j in range(4): k(f"v_cvt_pk_bf16_f32 v{y+8+j}, v{y+2*j}, v{y+2*j+1}")
        k(f"buffer_store_dwordx4 {vr(y+8,4)}, v{vout}, s[{rO}:{rO+3}], s{st1 if it else st0} offen")
    if not final:
        for it in range(2):
            y = Y + it * 32
            for j in range(4):
                k(f"v_lshlrev_b32 v{y+2*j}, 16, v{y+8+j}")
                k(f"v_and_b32 v{y+2*j+1}, 0xffff0000, v{y+8+j}")
        Sm = Y + 16; Sq = Y + 24; y0 = Y; y1 = Y + 32
        for j in range(4): k(f"v_pk_add_f32 {vr(Sm+2*j,2)}, {vr(y0+2*j,2)}, {vr(y1+2*j,2)}")
        for j in range(4): k(f"v_pk_mul_f32 {vr(Sq+2*j,2)}, {vr(y0+2*j,2)}, {vr(y0+2*j,2)}")
        for j in range(4): k(f"v_pk_fma_f32 {vr(Sq+2*j,2)}, {vr(y1+2*j,2)}, {vr(y1+2*j,2)}, {vr(Sq+2*j,2)}")
        for e in range(8): k(f"v_permlane32_swap_b32 v{Sm+e}, v{Sq+e}")
        for j in range(4): k(f"v_pk_add_f32 {vr(Sm+2*j,2)}, {vr(Sm+2*j,2)}, {vr(Sq+2*j,2)}")
        for e in range(4): k(f"v_permlane16_swap_b32 v{Sm+e}, v{Sm+4+e}")
        for j in range(2): k(f"v_pk_add_f32 {vr(Sm+2*j,2)}, {vr(Sm+2*j,2)}, {vr(Sm+4+2*j,2)}")
        for e in range(4): k(f"v_add_f32_dpp v{Sm+e}, v{Sm+e}, v{Sm+e} row_ror:8 row_mask:0xf bank_mask:0xf")
        k(f"""
        v_and_b32 v{t0}, 8, v{lane}
        v_cmp_ne_u32 vcc, 0, v{t0}
        v_lshrrev_b32 v{t1}, 5, v{lane}
        v_lshlrev_b32 v{t1}, 13, v{t1}
        v_add_u32 v{t1}, v{t1}, v{t0}
        v_and_b32 v{t0}, 16, v{lane}
        v_add_u32 v{t1}, v{t1}, v{t0}
        v_and_b32 v{t0}, 7, v{lane}
        v_lshl_add_u32 v{t1}, v{t0}, 5, v{t1}
        v_cndmask_b32 v{Sm}, v{Sm}, v{Sm+2}, vcc
        v_cndmask_b32 v{Sm+1}, v{Sm+1}, v{Sm+3}, vcc
        s_lshl_b32 s{st0}, s{sa}, 8
        buffer_atomic_add_f32 v{Sm}, v{t1}, s[{rS}:{rS+3}], s{st0} offen
        buffer_atomic_add_f32 v{Sm+1}, v{t1}, s[{rS}:{rS+3}], s{st0} offen offset:4
        """)
    k(f"{name}_end:\ns_endpgm")
    return k
```

```python
from asmgen import *
from layout import *
import math

def stamp(k, slot, which, sW=None):
    pass

def make_prep(name="prep_kernel"):
    NMAIN, NW1, NW2 = 256, 86, 43
    k = K(name, NMAIN + NW1 + NW2, 512, vgpr=None, sgpr=None, agpr=0)
    L_XT = 0
    L_PAR = 8192
    L_TAB = 12288
    TABSZ = 6656
    L_PART = 12288 + 2 * TABSZ
    k.lds = L_PART + 32768
    k.ns = 3
    k.nv = 1
    lane = k.v();
    sw = k.s()
    P = k.s(16, 4)
    Q = k.s(8, 4)
    WS = k.s(2)
    k(f"""
    s_load_dwordx16 s[{P}:{P+15}], s[0:1], 0
    s_load_dwordx2 s[{WS}:{WS+1}], s[0:1], 104
    s_load_dwordx8 s[{Q}:{Q+7}], s[0:1], 64
    v_and_b32 v{lane}, 63, v0
    v_lshrrev_b32 v2, 6, v0
    v_readfirstlane_b32 s{sw}, v2
    s_cmp_ge_u32 s2, {NMAIN}
    s_cbranch_scc1 {name}_notmain
    """)
    nv0, ns0 = k.nv, k.ns
    pU, pLA, pAI, pCR, pCI, pDT = P, P+2, P+4, P+6, P+8, P+10
    rU, rLA, rAI, rCR, rCI, rXT, rST, rKR = [k.s(4) for _ in range(8)]
    sch, sp, st0, st1, st2, sdt, ssd, ssu, stab = [k.s() for _ in range(9)]
    t0, t1, t2, t3 = k.v(), k.v(), k.v(), k.v()
    tm = k.v(16, 4)
    vla, vai, vcr, vci, vcr2, vci2 = range(tm, tm + 6)
    vrow = tm + 8
    vxt = tm + 12
    vo_n, vo_x, vo_r, vo_c = [k.v() for _ in range(4)]
    k(f"""
    s_lshr_b32 s{st0}, s{sw}, 2
    s_lshl_b32 s{sch}, s2, 1
    s_add_u32 s{sch}, s{sch}, s{st0}          ; channel
    s_and_b32 s{sp}, s{sw}, 3
    s_mul_i32 s{stab}, s{st0}, {TABSZ}
    s_add_u32 s{stab}, s{stab}, {L_TAB}
    ; offsets
    v_and_b32 v{vo_n}, 31, v{lane}
    v_lshlrev_b32 v{vo_n}, 1, v{vo_n}          ; (lane&31)*2
    v_lshlrev_b32 v{vo_c}, 2, v{lane}          ; lane*4
    v_lshrrev_b32 v{t0}, 3, v{lane}
    v_lshlrev_b32 v{t0}, 10, v{t0}
    v_and_b32 v{t1}, 7, v{lane}
    v_lshl_add_u32 v{vo_x}, v{t1}, 4, v{t0}
    v_lshlrev_b32 v{vo_r}, 4, v{lane}
    s_lshl_b32 s{st1}, s2, 2
    s_waitcnt lgkmcnt(0)
    s_load_dword s{sdt}, s[{pDT}:{pDT+1}], s{st1}
    """)
    k.srd(rLA, pLA, 0, 131072); k.srd(rAI, pAI, 0, 131072); k.srd(rCR, pCR, 0, 131072); k.srd(rCI, pCI, 0, 131072)
    k.srd(rU, pU, 0, 2097152)
    k(f"""
    s_lshl_b32 s{st0}, s{sch}, 8               ; ch*256
    s_lshl_b32 s{st1}, s{sp}, 6
    s_add_u32 s{st1}, s{st1}, s{st0}           ; ch*256 + p*64
    buffer_load_ushort v{vla}, v{vo_n}, s[{rLA}:{rLA+3}], s{st1} offen
    buffer_load_dword v{vcr2}, v{vo_c}, s[{rCR}:{rCR+3}], s{st0} offen
    buffer_load_dword v{vci2}, v{vo_c}, s[{rCI}:{rCI+3}], s{st0} offen
    buffer_load_ushort v{vai}, v{vo_n}, s[{rAI}:{rAI+3}], s{st1} offen
    buffer_load_ushort v{vcr}, v{vo_n}, s[{rCR}:{rCR+3}], s{st1} offen
    buffer_load_ushort v{vci}, v{vo_n}, s[{rCI}:{rCI+3}], s{st1} offen
    s_lshr_b32 s{st0}, s2, 3
    s_lshl_b32 s{st0}, s{st0}, 16
    s_lshl_b32 s{st1}, s{sw}, 13
    s_add_u32 s{st0}, s{st0}, s{st1}
    s_and_b32 s{st1}, s2, 7
    s_lshl_b32 s{st1}, s{st1}, 7
    s_add_u32 s{st0}, s{st0}, s{st1}
    s_lshl_b32 s{st1}, s{sw}, 10
    s_add_u32 m0, s{st1}, {L_XT}
    buffer_load_dwordx4 v{vo_x}, s[{rU}:{rU+3}], s{st0} offen lds
    s_lshl_b32 s{st2}, s2, 3
    s_add_u32 s{st2}, s{st2}, s{sw}
    s_lshl_b32 s{st0}, s{st2}, 10
    buffer_load_dwordx4 v[{vrow}:{vrow+3}], v{vo_r}, s[{rU}:{rU+3}], s{st0} offen
    """)
    k.srd(rXT, WS, XT0, 2097152)
    k.srd(rST, WS, ST1, 0x8000)
    k.srd(rKR, WS, KR, 512 * KR_CH)
    vi, vq, pc, pf = [k.v() for _ in range(4)]
    wa = k.v(4); ga = k.v(9)
    def Pfun(dst, src, ta, tb):
        k(f"""
        v_subrev_u32 v{ta}, 7, v{src}
        v_lshlrev_b32 v{ta}, 7, v{ta}
        v_subrev_u32 v{tb}, 10, v{src}
        v_lshlrev_b32 v{tb}, 9, v{tb}
        v_cmp_eq_u32 vcc, 15, v{src}
        v_max3_i32 v{dst}, v{src}, v{ta}, v{tb}
        v_mov_b32 v{ta}, 516
        v_cndmask_b32 v{dst}, v{dst}, v{ta}, vcc
        """)
    k(f"""
    v_and_b32 v{vi}, 15, v{lane}
    v_lshrrev_b32 v{vq}, 4, v{lane}
    """)
    Pfun(pc, vi, t0, t1)
    k(f"""
    v_cvt_f32_u32 v{pc}, v{pc}
    v_lshlrev_b32 v{pf}, 3, v{vi}
    v_cvt_f32_u32 v{pf}, v{pf}
    ; t3 = tab + 20*(16p + n')
    s_mul_i32 s{st0}, s{sp}, 320
    s_add_u32 s{st0}, s{st0}, s{stab}
    v_mul_u32_u24 v{t3}, 20, v{vi}
    v_add_u32 v{t3}, s{st0}, v{t3}
    """)
    for r in range(4):
        k(f"v_lshl_add_u32 v{t2}, v{vq}, 2, {r}")
        Pfun(wa + r, t2, t0, t1)
        k(f"""
        v_lshrrev_b32 v{t0}, 3, v{wa+r}
        v_lshl_add_u32 v{wa+r}, v{wa+r}, 1, v{t3}
        v_lshl_add_u32 v{wa+r}, v{t0}, 2, v{wa+r}
        """)
    vj = k.v(); vo_k = k.v()
    k(f"""
    v_and_b32 v{vj}, 255, v0
    v_lshlrev_b32 v{vo_k}, 4, v{vj}
    v_lshlrev_b32 v{t0}, 3, v{vj}
    v_sub_u32 v{t0}, 2047, v{t0}
    v_cvt_f32_u32 v{t0}, v{t0}
    """)
    for e in range(0, 10, 2):
        k(f"""
        v_add_f32 v{t1}, {f32(-float(e))}, v{t0}
        v_add_f32 v{t2}, {f32(-float(e+1))}, v{t0}
        v_max_f32 v{t1}, 0, v{t1}
        v_cvt_pk_bf16_f32 v{t1}, v{t1}, v{t2}
        v_and_b32 v{t2}, 0xffff0000, v{t1}
        v_lshlrev_b32 v{t1}, 16, v{t1}
        """)
        for ee, tt in ((e, t1), (e + 1, t2)):
            if ee > 8: continue
            k(f"""
            v_cvt_u32_f32 v{tt}, v{tt}
            v_lshrrev_b32 v{t3}, 3, v{tt}
            v_lshl_add_u32 v{ga+ee}, v{tt}, 1, s{stab}
            v_lshl_add_u32 v{ga+ee}, v{t3}, 2, v{ga+ee}
            """)
    zz = k.v(4)
    skr = k.s()
    k(f"""
    s_mul_i32 s{skr}, s{sch}, {KR_CH}
    v_mov_b32 v{zz}, 0
    v_mov_b32 v{zz+1}, 0
    v_mov_b32 v{zz+2}, 0
    v_mov_b32 v{zz+3}, 0
    v_lshrrev_b32 v{t0}, 1, v{lane}
    v_mul_u32_u24 v{t0}, {KR_CP}, v{t0}
    v_and_b32 v{t1}, 1, v{lane}
    v_lshl_add_u32 v{t0}, v{t1}, 4, v{t0}
    v_add_u32 v{t0}, 4096, v{t0}
    s_mov_b64 exec, 15
    buffer_store_dwordx4 v[{zz}:{zz+3}], v{t0}, s[{rKR}:{rKR+3}], s{skr} offen
    s_mov_b64 exec, -1
    """)
    vtr, vxo = k.v(), k.v()
    k(f"""
    v_lshrrev_b32 v{t0}, 2, v{vi}              ; r
    v_lshl_add_u32 v{t0}, v{vq}, 3, v{t0}      ; 8g + r
    v_lshlrev_b32 v{t0}, 7, v{t0}              ; *128
    v_and_b32 v{t1}, 3, v{vi}
    v_lshl_add_u32 v{vtr}, v{t1}, 3, v{t0}
    s_lshr_b32 s{st0}, s{sw}, 2
    s_lshl_b32 s{st0}, s{st0}, 12              ; lbase*128
    s_lshl_b32 s{st1}, s{sp}, 5                ; dblock*2
    s_add_u32 s{st0}, s{st0}, s{st1}
    v_add_u32 v{vtr}, s{st0}, v{vtr}
    v_lshlrev_b32 v{vxo}, 12, v{vi}
    v_lshl_add_u32 v{vxo}, v{vq}, 4, v{vxo}
    s_and_b32 s{st0}, s2, 7
    s_lshl_b32 s{st0}, s{st0}, 2
    s_add_u32 s{st0}, s{st0}, s{sp}
    s_lshl_b32 s{st0}, s{st0}, 16              ; (4*(wg&7)+p)*16*4096
    s_lshr_b32 s{st1}, s2, 3
    s_lshl_b32 s{st1}, s{st1}, 7
    s_add_u32 s{st0}, s{st0}, s{st1}
    s_lshr_b32 s{st1}, s{sw}, 2
    s_lshl_b32 s{st1}, s{st1}, 6
    s_add_u32 s{st0}, s{st0}, s{st1}
    s_waitcnt vmcnt(1) lgkmcnt(0)
    s_barrier
    ds_read_b64_tr_b16 v[{vxt}:{vxt+1}], v{vtr} offset:{L_XT}
    ds_read_b64_tr_b16 v[{vxt+2}:{vxt+3}], v{vtr} offset:{L_XT+512}
    """)
    A = k.v(8, 4); B = k.v(16, 4); acc = k.v(16, 4)
    par = acc; vdt = acc + 4; vfs = k.v()
    sA, sB = k.s(), k.s()
    k(f"""
    ; dt
    s_lshr_b32 s{st1}, s{sw}, 2
    s_lshl_b32 s{st1}, s{st1}, 4
    s_lshr_b32 s{sdt}, s{sdt}, s{st1}
    s_lshl_b32 s{sdt}, s{sdt}, 16
    v_mov_b32 v{t0}, {f32(LOG2E)}
    v_mul_f32 v{vdt}, s{sdt}, v{t0}
    v_lshlrev_b32 v{vla}, 16, v{vla}
    v_mul_f32 v{vla}, v{vla}, v{t0}
    v_exp_f32 v{vdt}, v{vdt}
    v_exp_f32 v{vla}, v{vla}
    ; max |C|
    v_and_b32 v{vcr2}, 0x7fff7fff, v{vcr2}
    v_and_b32 v{vci2}, 0x7fff7fff, v{vci2}
    v_pk_max_u16 v{vcr2}, v{vcr2}, v{vci2}
    v_cvt_pk_bf16_f32 v{vdt}, v{vdt}, v{vla}
    v_lshrrev_b32 v{vci2}, 16, v{vcr2}
    v_and_b32 v{vcr2}, 0xffff, v{vcr2}
    v_max_u32 v{vcr2}, v{vcr2}, v{vci2}
    v_and_b32 v{vla}, 0xffff0000, v{vdt}
    v_lshlrev_b32 v{vdt}, 16, v{vdt}
    v_max_u32_dpp v{vcr2}, v{vcr2}, v{vcr2} row_ror:8 row_mask:0xf bank_mask:0xf
    v_mul_f32 v{vla}, v{vla}, v{vdt}
    v_lshlrev_b32 v{vai}, 16, v{vai}
    v_max_u32_dpp v{vcr2}, v{vcr2}, v{vcr2} row_ror:4 row_mask:0xf bank_mask:0xf
    v_mul_f32 v{par}, {f32(-LOG2E)}, v{vla}
    v_mul_f32 v{vai}, v{vai}, v{vdt}
    v_max_u32_dpp v{vcr2}, v{vcr2}, v{vcr2} row_ror:2 row_mask:0xf bank_mask:0xf
    v_mul_f32 v{par+1}, {f32(1/(2*math.pi))}, v{vai}
    v_lshlrev_b32 v{vcr}, 16, v{vcr}
    v_max_u32_dpp v{vcr2}, v{vcr2}, v{vcr2} row_ror:1 row_mask:0xf bank_mask:0xf
    v_lshlrev_b32 v{vci}, 16, v{vci}
    s_waitcnt lgkmcnt(0)
    buffer_store_dwordx4 v[{vxt}:{vxt+3}], v{vxo}, s[{rXT}:{rXT+3}], s{st0} offen
    v_readlane_b32 s{sA}, v{vcr2}, 0
    v_readlane_b32 s{sB}, v{vcr2}, 16
    v_readlane_b32 s{st0}, v{vcr2}, 32
    v_readlane_b32 s{st1}, v{vcr2}, 48
    s_max_u32 s{sA}, s{sA}, s{sB}
    s_max_u32 s{st0}, s{st0}, s{st1}
    s_max_u32 s{sA}, s{sA}, s{st0}
    s_lshr_b32 s{sA}, s{sA}, 7
    s_max_u32 s{sA}, s{sA}, 1
    s_min_u32 s{sA}, s{sA}, 253
    s_lshl_b32 s{ssu}, s{sA}, 23
    s_sub_u32 s{ssd}, 254, s{sA}
    s_lshl_b32 s{ssd}, s{ssd}, 23
    v_mul_f32 v{par+2}, s{ssd}, v{vcr}
    v_mul_f32 v{par+3}, s{ssd}, v{vci}
    v_add_f32 v{vfs}, v{vdt}, v{vdt}
    v_mul_f32 v{vfs}, s{ssu}, v{vfs}
    s_lshl_b32 s{st0}, s{sw}, 9
    s_add_u32 s{st0}, s{st0}, {L_PAR}
    v_lshl_add_u32 v{t0}, v{vo_n}, 3, s{st0}
    ds_write_b128 v{t0}, v[{par}:{par+3}]
    v_lshl_add_u32 v{t1}, v{vq}, 6, s{st0}
    """)
    pr = k.v(32)
    k("s_waitcnt lgkmcnt(0)")
    for s in range(2):
        for e in range(4):
            b = pr + (s * 4 + e) * 4
            k(f"ds_read_b128 v[{b}:{b+3}], v{t1} offset:{s*256 + e*16}")
    ss, sq = acc + 5, acc + 6
    sone = k.s()
    k(f"""
    s_mov_b32 s{sone}, 0x3f803f80
    v_mov_b32 v{ss}, 0
    v_mov_b32 v{sq}, 0
    """)
    for j in range(4):
        k(f"v_dot2c_f32_bf16 v{ss}, s{sone}, v{vrow+j}")
        k(f"v_dot2c_f32_bf16 v{sq}, v{vrow+j}, v{vrow+j}")
    k(f"""
    v_permlane32_swap_b32 v{ss}, v{sq}
    v_add_f32 v{ss}, v{ss}, v{sq}
    v_add_f32_dpp v{ss}, v{ss}, v{ss} row_ror:8 row_mask:0xf bank_mask:0xf
    v_add_f32_dpp v{ss}, v{ss}, v{ss} row_ror:4 row_mask:0xf bank_mask:0xf
    v_add_f32_dpp v{ss}, v{ss}, v{ss} row_ror:2 row_mask:0xf bank_mask:0xf
    v_add_f32_dpp v{ss}, v{ss}, v{ss} row_ror:1 row_mask:0xf bank_mask:0xf
    v_mov_b32 v{sq}, v{ss}
    v_permlane16_swap_b32 v{ss}, v{sq}
    v_add_f32 v{ss}, v{ss}, v{sq}
    v_and_b32 v{t0}, 1, v{vq}
    v_cmp_eq_u32 vcc, 1, v{t0}
    v_lshlrev_b32 v{t0}, 14, v{t0}
    v_lshrrev_b32 v{t2}, 1, v{vq}
    v_lshl_add_u32 v{t0}, v{t2}, 13, v{t0}
    v_cndmask_b32 v{ss}, v{ss}, v{zz}, vcc
    s_lshl_b32 s{st2}, s{st2}, 2
    s_mov_b32 exec_lo, 0x00010001
    s_mov_b32 exec_hi, 0x00010001
    buffer_store_dword v{ss}, v{t0}, s[{rST}:{rST+3}], s{st2} offen
    s_mov_b64 exec, -1
    s_waitcnt lgkmcnt(0)
    """)
    for s in range(2):
        for e in range(4):
            b = pr + (s * 4 + e) * 4
            a_, i_, cr_, ci_ = b, b + 1, b + 2, b + 3
            x1, p1, x2, p2, c1, s1, c2, s2, m1, m2, m3, u1, u2, u3 = range(tm, tm + 14)
            Ad = A + s * 4 + e
            Bd = [B + nt * 4 + e for nt in range(4)]
            k(f"""
            v_mul_f32 v{p1}, v{i_}, v{pc}
            v_mul_f32 v{p2}, v{i_}, v{pf}
            v_mul_f32 v{x1}, v{a_}, v{pc}
            v_mul_f32 v{x2}, v{a_}, v{pf}
            v_fract_f32 v{p1}, v{p1}
            v_fract_f32 v{p2}, v{p2}
            v_exp_f32 v{x1}, v{x1}
            v_exp_f32 v{x2}, v{x2}
            v_cos_f32 v{c1}, v{p1}
            v_sin_f32 v{s1}, v{p1}
            v_cos_f32 v{c2}, v{p2}
            v_sin_f32 v{s2}, v{p2}
            v_mul_f32 v{c1}, v{x1}, v{c1}
            v_mul_f32 v{s1}, v{x1}, v{s1}
            v_mul_f32 v{c2}, v{x2}, v{c2}
            v_mul_f32 v{s2}, v{x2}, v{s2}
            v_cvt_pk_f16_f32 v{Ad}, v{c1}, -v{s1}
            v_mul_f32 v{x1}, v{cr_}, v{c2}
            v_mul_f32 v{x2}, v{cr_}, v{s2}
            v_fma_f32 v{x1}, -v{ci_}, v{s2}, v{x1}
            v_fma_f32 v{x2}, v{ci_}, v{c2}, v{x2}
            v_mov_b32_dpp v{m1}, v{Ad} row_newbcast:8 row_mask:0xf bank_mask:0xf
            v_mov_b32_dpp v{m2}, v{Ad} row_newbcast:9 row_mask:0xf bank_mask:0xf
            v_mov_b32_dpp v{m3}, v{Ad} row_newbcast:10 row_mask:0xf bank_mask:0xf
            v_cvt_pk_f16_f32 v{Bd[0]}, v{x1}, v{x2}
            v_pk_mul_f16 v{u1}, v{Bd[0]}, v{m1} op_sel:[0,0] op_sel_hi:[1,0]
            v_pk_mul_f16 v{u2}, v{Bd[0]}, v{m2} op_sel:[0,0] op_sel_hi:[1,0]
            v_pk_mul_f16 v{u3}, v{Bd[0]}, v{m3} op_sel:[0,0] op_sel_hi:[1,0]
            v_pk_fma_f16 v{Bd[1]}, v{Bd[0]}, v{m1}, v{u1} op_sel:[1,1,0] op_sel_hi:[0,1,1] neg_hi:[1,0,0]
            v_pk_fma_f16 v{Bd[2]}, v{Bd[0]}, v{m2}, v{u2} op_sel:[1,1,0] op_sel_hi:[0,1,1] neg_hi:[1,0,0]
            v_pk_fma_f16 v{Bd[3]}, v{Bd[0]}, v{m3}, v{u3} op_sel:[1,1,0] op_sel_hi:[0,1,1] neg_hi:[1,0,0]
            """)
        for nt in range(4):
            c = "0" if s == 0 else vr(acc + nt * 4, 4)
            k(f"v_mfma_f32_16x16x32_f16 {vr(acc+nt*4,4)}, {vr(A+s*4,4)}, {vr(B+nt*4,4)}, {c}")
    k(f"""
    s_lshl_b32 s{st0}, s{sw}, 12
    s_add_u32 s{st0}, s{st0}, {L_PART}
    v_add_u32 v{t0}, s{st0}, v{vo_r}
    s_lshr_b32 s{st0}, s{sw}, 2
    s_lshl_b32 s{st0}, s{st0}, 14
    s_lshl_b32 s{st1}, s{sp}, 10
    s_add_u32 s{st0}, s{st0}, s{st1}
    s_add_u32 s{st0}, s{st0}, {L_PART}
    v_add_u32 v{t1}, s{st0}, v{vo_r}
    """)
    for nt in range(4):
        k(f"ds_write_b128 v{t0}, {vr(acc+nt*4,4)} offset:{nt*1024}")
    k("s_waitcnt lgkmcnt(0)\ns_barrier")
    for pp in range(4):
        k(f"ds_read_b128 {vr(B+pp*4,4)}, v{t1} offset:{pp*4096}")
    k("s_waitcnt lgkmcnt(2)")
    for r in range(4): k(f"v_add_f32 v{B+r}, v{B+r}, v{B+4+r}")
    k("s_waitcnt lgkmcnt(0)")
    for r in range(4): k(f"v_add_f32 v{B+8+r}, v{B+8+r}, v{B+12+r}")
    for r in range(4): k(f"v_add_f32 v{B+r}, v{B+r}, v{B+8+r}")
    for r in range(4): k(f"v_mul_f32 v{B+r}, v{B+r}, v{vfs}")
    k(f"""
    v_cvt_pk_bf16_f32 v{B}, v{B}, v{B+1}
    v_cvt_pk_bf16_f32 v{B+2}, v{B+2}, v{B+3}
    ds_write_b16_d16_hi v{wa+3}, v{B+2}
    s_mov_b32 exec_hi, 0xffff0000
    ds_write_b16 v{wa}, v{B}
    ds_write_b16_d16_hi v{wa+1}, v{B}
    ds_write_b16 v{wa+2}, v{B+2}
    s_mov_b32 exec_hi, -1
    s_waitcnt lgkmcnt(0)
    s_barrier
    """)
    for e in range(9): k(f"ds_read_u16 v{tm+e}, v{ga+e}")
    O = A; E = A + 4
    k(f"""
    v_cmp_eq_u32 vcc, 255, v{vj}
    s_waitcnt lgkmcnt(0)
    v_cndmask_b32 v{tm+8}, v{tm+8}, v{zz}, vcc
    """)
    for j in range(4):
        k(f"v_lshl_or_b32 v{O+j}, v{tm+2*j+1}, 16, v{tm+2*j}")
    k(f"buffer_store_dwordx4 {vr(O,4)}, v{vo_k}, s[{rKR}:{rKR+3}], s{skr} offen")
    for j in range(4):
        k(f"v_lshl_or_b32 v{E+j}, v{tm+2*j+2}, 16, v{tm+2*j+1}")
    k(f"s_add_u32 s{skr}, s{skr}, {KR_CP}")
    k(f"buffer_store_dwordx4 {vr(E,4)}, v{vo_k}, s[{rKR}:{rKR+3}], s{skr} offen")
    k("s_endpgm")
    nvmax, nsmax = k.nv, k.ns
    k.nv, k.ns = nv0, ns0
    k(f"""
    {name}_notmain:
    s_cmp_ge_u32 s2, {NMAIN+NW1}
    s_cbranch_scc1 {name}_notw1
    """)
    rW, rO = k.s(4), k.s(4)
    sidx, smat, sfb, st0, st1, sone, slb = [k.s() for _ in range(7)]
    sb = k.s(2)
    t0, t1, vo, vtr, vso, vcs = [k.v() for _ in range(6)]
    fr = k.v(16, 4)
    k(f"""
    s_sub_u32 s{sidx}, s2, {NMAIN}
    s_and_b32 s{smat}, s{sidx}, 1
    s_lshr_b32 s{sfb}, s{sidx}, 1
    v_lshrrev_b32 v{t0}, 2, v{lane}
    v_mul_u32_u24 v{t0}, 2752, v{t0}
    v_and_b32 v{t1}, 3, v{lane}
    v_lshl_add_u32 v{vo}, v{t1}, 4, v{t0}
    s_mul_i32 s{st0}, s{sw}, {64*2752}
    s_lshl_b32 s{st1}, s{sfb}, 6
    s_add_u32 s{st0}, s{st0}, s{st1}
    s_lshl_b32 s{slb}, s{sw}, 12
    s_waitcnt lgkmcnt(0)
    s_cmp_eq_u32 s{smat}, 0
    s_cselect_b32 s{sb}, s{Q}, s{Q+2}
    s_cselect_b32 s{sb+1}, s{Q+1}, s{Q+3}
    """)
    k.srd(rW, sb, 0, 512 * 2752)
    for i in range(4):
        k(f"s_add_u32 m0, s{slb}, {i*1024}")
        k(f"buffer_load_dwordx4 v{vo}, s[{rW}:{rW+3}], s{st0} offen lds")
        if i < 3: k(f"s_add_u32 s{st0}, s{st0}, {16*2752}")
    k.srd(rO, WS, W1F, W1F_SZ)
    k(f"""
    v_lshrrev_b32 v{t0}, 5, v{lane}            ; hl
    v_lshlrev_b32 v{vtr}, 9, v{t0}
    v_bfe_u32 v{t1}, v{lane}, 2, 2             ; r
    v_lshl_add_u32 v{vtr}, v{t1}, 6, v{vtr}
    v_bfe_u32 v{t1}, v{lane}, 4, 1             ; un
    v_lshl_add_u32 v{vtr}, v{t1}, 5, v{vtr}
    v_mul_u32_u24 v{vso}, {33*1024}, v{t1}
    v_lshl_add_u32 v{vso}, v{t0}, 9, v{vso}    ; + 32hl*16
    v_and_b32 v{t1}, 1, v{lane}
    v_lshl_add_u32 v{vtr}, v{t1}, 4, v{vtr}
    v_bfe_u32 v{t1}, v{lane}, 1, 1
    v_lshl_add_u32 v{vtr}, v{t1}, 3, v{vtr}
    v_add_u32 v{vtr}, s{slb}, v{vtr}
    v_and_b32 v{t1}, 15, v{lane}
    v_lshl_add_u32 v{vso}, v{t1}, 4, v{vso}
    s_mul_i32 s{st0}, s{sfb}, {2*33*1024}
    s_lshl_b32 s{st1}, s{smat}, 8
    s_add_u32 s{st0}, s{st0}, s{st1}
    s_add_u32 s{st1}, s{st0}, s{slb}
    s_mov_b32 s{sone}, 0x3f803f80
    v_mov_b32 v{vcs}, 0
    s_waitcnt vmcnt(0)
    """)
    for i in range(4):
        for c in range(2):
            k(f"ds_read_b64_tr_b16 {vr(fr+i*4+2*c,2)}, v{vtr} offset:{i*1024+c*256}")
    for i in range(4):
        k(f"s_waitcnt lgkmcnt({6-2*i})")
        k(f"buffer_store_dwordx4 {vr(fr+i*4,4)}, v{vso}, s[{rO}:{rO+3}], s{st1} offen offset:{i*1024}")
        for j in range(4): k(f"v_dot2c_f32_bf16 v{vcs}, s{sone}, v{fr+i*4+j}")
    L_RED = 32768
    k(f"""
    v_lshlrev_b32 v{t0}, 2, v0
    ds_write_b32 v{t0}, v{vcs} offset:{L_RED}
    s_waitcnt lgkmcnt(0)
    s_barrier
    s_cmp_lg_u32 s{sw}, 0
    s_cbranch_scc1 {name}_end
    v_and_b32 v{t0}, 31, v{lane}
    v_lshlrev_b32 v{t0}, 2, v{t0}
    """)
    rd = k.v(16)
    for j in range(16): k(f"ds_read_b32 v{rd+j}, v{t0} offset:{L_RED + j*128}")
    k("s_waitcnt lgkmcnt(0)")
    for st in (8, 4, 2, 1):
        for j in range(st): k(f"v_add_f32 v{rd+j}, v{rd+j}, v{rd+j+st}")
    o = k.v(4, 4)
    k(f"""
    v_sub_f32 v{rd}, 0, v{rd}
    v_cvt_pk_bf16_f32 v{rd+1}, v{rd}, v{rd}
    v_and_b32 v{rd+2}, 0xffff0000, v{rd+1}
    v_sub_f32 v{rd+3}, v{rd}, v{rd+2}          ; r1
    v_cvt_pk_bf16_f32 v{o}, v{rd}, v{rd+3}
    v_and_b32 v{rd+2}, 0xffff0000, v{o}
    v_sub_f32 v{rd+3}, v{rd+3}, v{rd+2}        ; r2
    v_mov_b32 v{o+2}, 0
    v_mov_b32 v{o+3}, 0
    v_cvt_pk_bf16_f32 v{o+1}, v{rd+3}, v{o+2}
    s_mov_b32 exec_lo, 0
    v_mov_b32 v{o}, 0
    v_mov_b32 v{o+1}, 0
    s_mov_b32 exec_lo, -1
    s_add_u32 s{st0}, s{st0}, {32*1024}
    buffer_store_dwordx4 {vr(o,4)}, v{vso}, s[{rO}:{rO+3}], s{st0} offen
    s_endpgm
    """)
    nvmax, nsmax = max(nvmax, k.nv), max(nsmax, k.ns)
    k.nv, k.ns = nv0, ns0
    k(f"""
    {name}_notw1:
    s_cmp_ge_u32 s2, {NMAIN+NW1+NW2}
    s_cbranch_scc1 {name}_end
    """)
    rW, rO = k.s(4), k.s(4)
    sidx, st0, st1, slb = [k.s() for _ in range(4)]
    t0, t1, vo, vtr, vso = [k.v() for _ in range(5)]
    fr = k.v(16, 4)
    k(f"""
    s_sub_u32 s{sidx}, s2, {NMAIN+NW1}
    v_lshrrev_b32 v{t0}, 3, v{lane}
    v_lshlrev_b32 v{t0}, 10, v{t0}
    v_and_b32 v{t1}, 7, v{lane}
    v_lshl_add_u32 v{vo}, v{t1}, 4, v{t0}
    s_lshl_b32 s{st0}, s{sidx}, 15
    s_lshl_b32 s{st1}, s{sw}, 7
    s_add_u32 s{st0}, s{st0}, s{st1}
    s_lshl_b32 s{slb}, s{sw}, 12
    s_waitcnt lgkmcnt(0)
    """)
    k.srd(rW, Q + 4, 0, 1376 * 1024)
    for i in range(4):
        k(f"s_add_u32 m0, s{slb}, {i*1024}")
        k(f"buffer_load_dwordx4 v{vo}, s[{rW}:{rW+3}], s{st0} offen lds")
        if i < 3: k(f"s_add_u32 s{st0}, s{st0}, 8192")
    k.srd(rO, WS, W2F, W2F_SZ)
    k(f"""
    v_lshrrev_b32 v{t0}, 5, v{lane}
    v_lshlrev_b32 v{vtr}, 10, v{t0}
    v_bfe_u32 v{t1}, v{lane}, 2, 2
    v_lshl_add_u32 v{vtr}, v{t1}, 7, v{vtr}
    v_bfe_u32 v{t1}, v{lane}, 4, 1
    v_lshl_add_u32 v{vtr}, v{t1}, 5, v{vtr}
    v_and_b32 v{t1}, 3, v{lane}
    v_lshl_add_u32 v{vtr}, v{t1}, 3, v{vtr}
    v_add_u32 v{vtr}, s{slb}, v{vtr}
    v_lshlrev_b32 v{vso}, 4, v{lane}
    s_mul_i32 s{st0}, s{sw}, {2*86*1024}
    s_lshl_b32 s{st1}, s{sidx}, 11
    s_add_u32 s{st0}, s{st0}, s{st1}
    s_add_u32 s{st1}, s{st0}, {86*1024}
    s_waitcnt vmcnt(0)
    """)
    for dtl in range(2):
        for un in range(2):
            i = dtl * 2 + un
            for c in range(2):
                k(f"ds_read_b64_tr_b16 {vr(fr+i*4+2*c,2)}, v{vtr} offset:{un*2048+c*512+dtl*64}")
    for dtl in range(2):
        for un in range(2):
            i = dtl * 2 + un
            k(f"s_waitcnt lgkmcnt({6-2*i})")
            k(f"buffer_store_dwordx4 {vr(fr+i*4,4)}, v{vso}, s[{rO}:{rO+3}], s{st1 if dtl else st0} offen offset:{un*1024}")
    k(f"{name}_end:\ns_endpgm")
    k.nv, k.ns = max(nvmax, k.nv), max(nsmax, k.ns)
    return k
```

```python
XT0   = 0x0000000
XT2   = 0x0200000
XB1   = 0x0400000
XB3   = 0x0700000
XB_SZ = 22 * 512 * 192
KR    = 0x0A00000
KR_CP = 4224; KR_CH = 8448
ST1   = 0x0F00000
ST2   = 0x0F04000
W1F   = 0x1000000
W1F_SZ = 86 * 33 * 1024
W2F   = 0x1400000
W2F_SZ = 16 * 86 * 1024
HF    = 0x1800000
HF_SZ = 64 * 86 * 1024
TS    = 0x2000000
LOG2E = 1.4426950408889634
```

```python
import sys
from asmgen import *
from layout import *
from k_prep import make_prep
from k_conv import make_conv
from k_g1 import make_g1
from k_g2 import make_g2
HDR = open("interleave_layers__ssm_conv_s4d__glu_gated_geglu__prompt.s.ref").read().split("; Override launch")[0]
HDR = "\n".join(l[2:] if l.startswith("; ") else l[1:] for l in HDR.strip().split("\n"))
def build(path, upto=99):
    ks = [make_prep(), make_conv("conv1_kernel", XT0, ST1, XB1), make_g1("g1a_kernel", XB1), make_g2("g2a_kernel", XB1, False, XT2, ST2),
          make_conv("conv2_kernel", XT2, ST2, XB3), make_g1("g1b_kernel", XB3), make_g2("g2b_kernel", XB3, True)]
    emit(path, ks, ks[:upto], HDR)
    for k in ks: print(k.name, "vgpr", k.nv, "agpr", k.na, "sgpr", k.ns, "lds", k.lds, "nops", k.inserted, "lines", len(k.lines))
if __name__ == "__main__":
    build(sys.argv[1] if len(sys.argv) > 1 else "full.s")
```

```python
import hazard
HEADER = """.amdgcn_target "amdgcn-amd-amdhsa--gfx950"
.text
"""
class K:
    def __init__(self, name, grid, block, lds=0, vgpr=256, sgpr=102, accum=None, agpr=0, fix=True):
        self.name = name; self.grid = grid; self.block = block; self.lds = lds
        self.vgpr = vgpr; self.sgpr = sgpr; self.accum = accum; self.agpr = agpr
        self.lines = []
        self._lab = 0; self.fix = fix
        self.nv = 0; self.ns = 0; self.na = 0
        self.vm = []
        self.lg = []
    def __call__(self, s):
        for ln in s.split("\n"):
            ln = ln.strip()
            if ln: self.lines.append("    " + ln if not ln.endswith(":") else ln)
    def label(self, base="L"):
        self._lab += 1
        return f"{self.name}_{base}{self._lab}"
    def v(self, n=1, al=None):
        al = al or (1 if n == 1 else 2 if n < 4 else 4)
        self.nv = (self.nv + al - 1) // al * al
        r = self.nv; self.nv += n; return r
    def a(self, n=1, al=None):
        al = al or (1 if n == 1 else 2 if n < 4 else 4)
        self.na = (self.na + al - 1) // al * al
        r = self.na; self.na += n; return r
    def s(self, n=1, al=None):
        al = al or (1 if n == 1 else 2 if n < 4 else 4)
        self.ns = (self.ns + al - 1) // al * al
        r = self.ns; self.ns += n; return r
    def vmem(self, instr, tag=None):
        self(instr); self.vm.append(tag)
    def wait_vm(self, tag):
        idx = max(i for i, t in enumerate(self.vm) if t == tag) if tag in self.vm else -1
        if idx < 0: return
        n = len(self.vm) - 1 - idx
        assert n <= 63, n
        self(f"s_waitcnt vmcnt({n})")
        self.vm = self.vm[idx + 1:]
    def wait_vm_all(self):
        self("s_waitcnt vmcnt(0)"); self.vm = []
    def lds_op(self, instr, tag=None):
        self(instr); self.lg.append(tag)
    def wait_lg(self, tag):
        idx = max(i for i, t in enumerate(self.lg) if t == tag) if tag in self.lg else -1
        if idx < 0: return
        n = len(self.lg) - 1 - idx
        if n > 15: n = 15
        self(f"s_waitcnt lgkmcnt({n})")
        self.lg = self.lg[len(self.lg) - n:] if n else []
    def wait_lg_all(self):
        self("s_waitcnt lgkmcnt(0)"); self.lg = []
    def srd(self, d, base, off, size):
        if off == 0:
            self(f"s_mov_b32 s{d}, s{base}\ns_mov_b32 s{d+1}, s{base+1}")
        else:
            o = off if isinstance(off, str) else hex(off)
            self(f"s_add_u32 s{d}, s{base}, {o}\ns_addc_u32 s{d+1}, s{base+1}, 0")
        sz = size if isinstance(size, str) else hex(size)
        self(f"s_mov_b32 s{d+2}, {sz}\ns_mov_b32 s{d+3}, 0x20000")
    diag = False
    def stamp(self, real=False):
        if not K.diag: return
        if not hasattr(self, "nst"): self.nst = 0
        assert self.nst < 10
        b = 80 + 2 * self.nst; self.nst += 1
        self(f"{'s_memrealtime' if real else 's_memtime'} s[{b}:{b+1}]")
    def stamp_flush(self, WS, slot, sw):
        if not K.diag: return
        from layout import TS
        self("s_waitcnt vmcnt(0)")
        self.stamp(); self.stamp(real=True)
        self("s_waitcnt lgkmcnt(0)")
        self.srd(76, WS, TS + slot * 0x40000, 0x40000)
        self(f"s_lshl_b32 s100, s2, 3\ns_add_u32 s100, s100, s{sw}\ns_lshl_b32 s100, s100, 6\nv_mov_b32 v0, 0\ns_mov_b64 exec, 1")
        for i in range(self.nst):
            self(f"v_mov_b32 v1, s{80+2*i}\nbuffer_store_dword v1, v0, s[76:79], s100 offen offset:{4*i}")
        self.sgpr = 102
    def text(self):
        out = [f".globl {self.name}", ".p2align 8", f".type {self.name},@function", f"{self.name}:"]
        lines = self.lines
        if self.fix:
            lines, n = hazard.fix(lines)
            self.inserted = n
        out += lines
        return "\n".join(out) + "\n"
    def desc(self):
        vg = self.vgpr if self.vgpr else self.nv
        ag = self.agpr if self.agpr is not None else self.na
        sg = self.sgpr if self.sgpr else self.ns
        assert vg <= 256 and ag <= 256 and sg <= 102, (vg, ag, sg)
        accum = (vg + 3) // 4 * 4
        nfv = accum + ag if ag else vg
        return f""".p2align 6
.amdhsa_kernel {self.name}
  .amdhsa_next_free_vgpr {nfv}
  .amdhsa_next_free_sgpr {sg}
  .amdhsa_accum_offset {accum}
  .amdhsa_group_segment_fixed_size 0
  .amdhsa_kernarg_size 112
  .amdhsa_user_sgpr_count 2
  .amdhsa_user_sgpr_kernarg_segment_ptr 1
  .amdhsa_system_sgpr_workgroup_id_x 1
  .amdhsa_float_denorm_mode_32 3
  .amdhsa_float_denorm_mode_16_64 3
.end_amdhsa_kernel
"""
def vr(b, n=1): return f"v{b}" if n == 1 else f"v[{b}:{b+n-1}]"
def ar(b, n=1): return f"a{b}" if n == 1 else f"a[{b}:{b+n-1}]"
def sr(b, n=1): return f"s{b}" if n == 1 else f"s[{b}:{b+n-1}]"
def f32(x):
    import struct
    return hex(struct.unpack("<I", struct.pack("<f", x))[0])
def emit(path, kernels, order, comment=""):
    s = ""
    for ln in comment.split("\n"):
        if ln.strip(): s += "; " + ln.rstrip() + "\n"
    for k in order:
        g, b = k.grid, k.block
        s += f"; @launch kernel={k.name} grid=({g},1,1) block=({b},1,1) lds={k.lds}\n"
    s += HEADER
    for k in kernels: s += k.text()
    s += '.section .rodata,"a"\n'
    for k in kernels: s += k.desc()
    open(path, "w").write(s)
```

```python
from asmgen import *
from layout import *

def ln_finalize_pairs(k, S1, S2, M, Rr, n, tmp, s_inv, s_eps):
    for i in range(0, n, 2):
        k(f"v_pk_mul_f32 {vr(S1+i,2)}, {vr(S1+i,2)}, {sr(s_inv,2)}")
    for i in range(0, n, 2):
        k(f"v_pk_mul_f32 {vr(S2+i,2)}, {vr(S2+i,2)}, {sr(s_inv,2)}")
    for i in range(0, n, 2):
        k(f"v_pk_fma_f32 {vr(S2+i,2)}, {vr(S1+i,2)}, {vr(S1+i,2)}, {vr(S2+i,2)} neg_lo:[1,0,0] neg_hi:[1,0,0]")
    for i in range(0, n, 2):
        k(f"v_cvt_pk_bf16_f32 v{tmp+i}, -v{S1+i}, -v{S1+i+1}")
        k(f"v_cvt_pk_bf16_f32 v{tmp+i+1}, v{S2+i}, v{S2+i+1}")
    for i in range(0, n, 2):
        k(f"v_lshlrev_b32 v{M+i}, 16, v{tmp+i}")
        k(f"v_and_b32 v{M+i+1}, 0xffff0000, v{tmp+i}")
        k(f"v_lshlrev_b32 v{Rr+i}, 16, v{tmp+i+1}")
        k(f"v_and_b32 v{Rr+i+1}, 0xffff0000, v{tmp+i+1}")
    for i in range(0, n, 2):
        k(f"v_max_f32 v{Rr+i}, 0, v{Rr+i}")
        k(f"v_max_f32 v{Rr+i+1}, 0, v{Rr+i+1}")
    for i in range(0, n, 2):
        k(f"v_pk_add_f32 {vr(Rr+i,2)}, {vr(Rr+i,2)}, {sr(s_eps,2)}")
    for i in range(0, n, 2):
        k(f"v_cvt_pk_bf16_f32 v{tmp+i}, v{Rr+i}, v{Rr+i+1}")
    for i in range(0, n, 2):
        k(f"v_lshlrev_b32 v{Rr+i}, 16, v{tmp+i}")
        k(f"v_and_b32 v{Rr+i+1}, 0xffff0000, v{tmp+i}")
    for i in range(n):
        k(f"v_sqrt_f32 v{Rr+i}, v{Rr+i}")
    for i in range(0, n, 2):
        k(f"v_cvt_pk_bf16_f32 v{tmp+i}, v{Rr+i}, v{Rr+i+1}")
    for i in range(0, n, 2):
        k(f"v_lshlrev_b32 v{Rr+i}, 16, v{tmp+i}")
        k(f"v_and_b32 v{Rr+i+1}, 0xffff0000, v{tmp+i}")
    for i in range(n):
        k(f"v_rcp_f32 v{Rr+i}, v{Rr+i}")

class Interleaver:
    def __init__(self, k): self.k = k; self.q = []
    def add(self, fn): self.q.append(fn)
    def pop(self, n=1):
        for _ in range(n):
            if self.q: self.q.pop(0)()
    def flush(self):
        while self.q: self.q.pop(0)()

def make_conv(name, XT, ST, XB, exact=True, pre=12, slot=1):
    k = K(name, 256, 256, vgpr=None, sgpr=None, agpr=None)
    UB = 4608
    L_P = 2 * UB
    k.lds = L_P + 4 * 8 * 1152
    k.ns = 3; k.nv = 1
    lane = k.v(); sw = k.s()
    WS = k.s(2); pD = k.s(2)
    rX, rS, rK, rO = [k.s(4) for _ in range(4)]
    st0, st1, sc, sp, sko, sD = [k.s() for _ in range(6)]
    sinv, seps, sD0, sD1 = [k.s(2) for _ in range(4)]
    t0, t1, t2 = k.v(), k.v(), k.v()
    vo16, vo32, vko, vbo, vpw, vpr, vout = [k.v() for _ in range(7)]
    X = k.v(8, 4); S1 = k.v(8, 4); S2 = k.v(8, 4); tmp = k.v(8, 4)
    XF = k.v(16, 4); U = k.v(8, 4); T = k.v(16, 4)
    acc = k.v(32, 4)
    Bf = k.v(128, 4)
    Af = k.a(128, 4)
    k.stamp(real=True); k.stamp()
    k(f"""
    s_cmp_ge_u32 s2, 256
    s_cbranch_scc1 {name}_end
    s_load_dwordx2 s[{WS}:{WS+1}], s[0:1], 104
    s_load_dwordx2 s[{pD}:{pD+1}], s[0:1], 48
    v_and_b32 v{lane}, 63, v0
    v_lshrrev_b32 v{t0}, 6, v0
    v_readfirstlane_b32 s{sw}, v{t0}
    v_lshlrev_b32 v{vo16}, 4, v0
    v_lshlrev_b32 v{vo32}, 5, v0
    v_and_b32 v{t0}, 14, v{lane}
    v_lshrrev_b32 v{t1}, 4, v{lane}            ; q
    v_lshl_add_u32 v{t0}, v{t1}, 3, v{t0}
    v_sub_u32 v{t0}, 38, v{t0}
    v_and_b32 v{t2}, 1, v{lane}
    v_xor_b32 v{t2}, 1, v{t2}
    v_mul_u32_u24 v{t2}, {KR_CP}, v{t2}
    v_lshl_add_u32 v{vko}, v{t0}, 1, v{t2}
    s_lshr_b32 s{sc}, s{sw}, 1
    s_and_b32 s{sp}, s{sw}, 1
    s_lshl_b32 s{st0}, s2, 1
    s_add_u32 s{st0}, s{st0}, s{sc}
    s_mul_i32 s{sko}, s{st0}, {KR_CH}
    s_lshl_b32 s{st1}, s{sp}, 6
    s_sub_u32 s{sko}, s{sko}, s{st1}
    s_add_u32 s{sko}, s{sko}, 64
    s_lshl_b32 s{st0}, s2, 13
    s_lshl_b32 s{st1}, s2, 2
    s_waitcnt lgkmcnt(0)
    s_load_dword s{sD}, s[{pD}:{pD+1}], s{st1}
    """)
    k.stamp()
    k.srd(rS, WS, ST, 0x4000)
    k.vmem(f"buffer_load_dwordx4 {vr(S1,4)}, v{vo32}, s[{rS}:{rS+3}], 0 offen", "st")
    k.vmem(f"buffer_load_dwordx4 {vr(S1+4,4)}, v{vo32}, s[{rS}:{rS+3}], 0 offen offset:16", "st")
    k(f"s_mov_b32 s{st1}, 0x2000")
    k.vmem(f"buffer_load_dwordx4 {vr(S2,4)}, v{vo32}, s[{rS}:{rS+3}], s{st1} offen", "st")
    k.vmem(f"buffer_load_dwordx4 {vr(S2+4,4)}, v{vo32}, s[{rS}:{rS+3}], s{st1} offen offset:16", "st")
    k.srd(rX, WS, XT, 2097152)
    k.vmem(f"buffer_load_dwordx4 {vr(X,4)}, v{vo16}, s[{rX}:{rX+3}], s{st0} offen", "x")
    k(f"s_add_u32 s{st0}, s{st0}, 4096")
    k.vmem(f"buffer_load_dwordx4 {vr(X+4,4)}, v{vo16}, s[{rX}:{rX+3}], s{st0} offen", "x")
    k.srd(rK, WS, KR, 512 * KR_CH)
    def kload(a):
        k.vmem(f"buffer_load_dwordx4 {ar(Af+4*a,4)}, v{vko}, s[{rK}:{rK+3}], s{sko} offen offset:{64*(62-2*a)}", ("k", a))
    nk = 0
    for a in range(pre): kload(a); nk += 1
    k.srd(rO, WS, XB, XB_SZ)
    k(f"""
    v_mov_b32 v{tmp}, 0
    v_mov_b32 v{tmp+1}, 0
    v_mov_b32 v{tmp+2}, 0
    v_mov_b32 v{tmp+3}, 0
    v_lshrrev_b32 v{t0}, 5, v{lane}
    v_mul_u32_u24 v{t0}, {UB - 512}, v{t0}
    v_lshl_add_u32 v{t0}, v{lane}, 4, v{t0}
    ds_write_b128 v{t0}, {vr(tmp,4)}
    v_and_b32 v{t0}, 15, v{lane}
    v_lshlrev_b32 v{t0}, 5, v{t0}
    v_lshlrev_b32 v{t2}, 4, v{t1}
    v_sub_u32 v{vbo}, v{t0}, v{t2}
    s_mul_i32 s{st0}, s{sc}, {UB}
    s_add_u32 s{st0}, s{st0}, 144
    s_lshl_b32 s{st1}, s{sp}, 6
    s_sub_u32 s{st0}, s{st0}, s{st1}
    v_add_u32 v{vbo}, s{st0}, v{vbo}
    s_mul_i32 s{st0}, s{sw}, 9216
    s_add_u32 s{st0}, s{st0}, {L_P}
    v_lshrrev_b32 v{t0}, 5, v{lane}
    v_lshlrev_b32 v{t0}, 7, v{t0}
    v_lshl_add_u32 v{t0}, v{lane}, 4, v{t0}
    v_add_u32 v{vpw}, s{st0}, v{t0}
    v_lshrrev_b32 v{t0}, 5, v0
    v_mul_u32_u24 v{t0}, 1152, v{t0}
    v_and_b32 v{t2}, 1, v0
    v_mul_u32_u24 v{t2}, 640, v{t2}
    v_add_u32 v{t0}, v{t0}, v{t2}
    v_bfe_u32 v{t2}, v0, 1, 4
    v_lshl_add_u32 v{vpr}, v{t2}, 4, v{t0}
    ; out offset: rb = t/12 ; rb*98304 + (t%12)*16
    v_mul_u32_u24 v{t0}, 171, v0
    v_lshrrev_b32 v{t0}, 11, v{t0}
    v_mul_u32_u24 v{t0}, {98304 - 192}, v{t0}
    v_add_u32 v{vout}, v{t0}, v{vo16}
    s_mov_b32 s{sinv}, {f32(1/512)}
    s_mov_b32 s{sinv+1}, {f32(1/512)}
    s_mov_b32 s{seps}, {f32(1e-5)}
    s_mov_b32 s{seps+1}, {f32(1e-5)}
    s_waitcnt lgkmcnt(0)
    s_lshl_b32 s{sD0}, s{sD}, 16
    s_mov_b32 s{sD0+1}, s{sD0}
    s_and_b32 s{sD1}, s{sD}, 0xffff0000
    s_mov_b32 s{sD1+1}, s{sD1}
    """)
    k.wait_vm("st")
    k.stamp()
    mark = len(k.lines)
    ln_finalize_pairs(k, S1, S2, S1, S2, 8, tmp, sinv, seps)
    body = k.lines[mark:]; del k.lines[mark:]
    for i, ln in enumerate(body):
        k.lines.append(ln)
        if i % 14 == 13 and nk < 32: kload(nk); nk += 1
    k.wait_vm("x")
    mark = len(k.lines)
    for c in range(2):
        for j in range(4):
            xf = XF + c * 8 + 2 * j
            k(f"v_lshlrev_b32 v{xf}, 16, v{X+c*4+j}")
            k(f"v_and_b32 v{xf+1}, 0xffff0000, v{X+c*4+j}")
        for j in range(4):
            k(f"v_pk_add_f32 {vr(T+2*j,2)}, {vr(XF+c*8+2*j,2)}, {vr(S1+2*j,2)}")
        if exact:
            for j in range(4): k(f"v_cvt_pk_bf16_f32 v{tmp+j}, v{T+2*j}, v{T+2*j+1}")
            for j in range(4):
                k(f"v_lshlrev_b32 v{T+2*j}, 16, v{tmp+j}")
                k(f"v_and_b32 v{T+2*j+1}, 0xffff0000, v{tmp+j}")
        for j in range(4):
            k(f"v_pk_mul_f32 {vr(T+2*j,2)}, {vr(T+2*j,2)}, {vr(S2+2*j,2)}")
        for j in range(4): k(f"v_cvt_pk_bf16_f32 v{U+c*4+j}, v{T+2*j}, v{T+2*j+1}")
        k(f"ds_write_b128 v{vo16}, {vr(U+c*4,4)} offset:{c*UB+512}")
    body = k.lines[mark:]; del k.lines[mark:]
    for i, ln in enumerate(body):
        k.lines.append(ln)
        if i % 14 == 13 and nk < 32: kload(nk); nk += 1
    k("s_waitcnt lgkmcnt(0)\ns_barrier")
    k.stamp()
    order = []
    for a in range(4):
        for t in range(7, -1, -1):
            order.append(4 * t - a + 3)
    assert sorted(order) == list(range(32))
    nb = 0
    def bread():
        nonlocal nb
        b = order[nb]; nb += 1
        k.lds_op(f"ds_read_b128 {vr(Bf+4*b,4)}, v{vbo} offset:{128*b}", ("b", b))
    for _ in range(8): bread()
    fill = Interleaver(k)
    for c in range(2):
        sDc = sD0 if c == 0 else sD1
        for j in range(4):
            tt = T + c * 8 + 2 * j; u = U + c * 4 + j; xf = XF + c * 8 + 2 * j
            fill.add(lambda tt=tt, u=u: k(f"v_lshlrev_b32 v{tt}, 16, v{u}"))
            fill.add(lambda tt=tt, u=u: k(f"v_and_b32 v{tt+1}, 0xffff0000, v{u}"))
            if exact:
                fill.add(lambda tt=tt, sDc=sDc: k(f"v_mul_f32 v{tt}, s{sDc}, v{tt}"))
                fill.add(lambda tt=tt, sDc=sDc: k(f"v_mul_f32 v{tt+1}, s{sDc}, v{tt+1}"))
                fill.add(lambda tt=tt, u=u: k(f"v_cvt_pk_bf16_f32 v{u}, v{tt}, v{tt+1}"))
                fill.add(lambda tt=tt, u=u: k(f"v_lshlrev_b32 v{tt}, 16, v{u}"))
                fill.add(lambda tt=tt, u=u: k(f"v_and_b32 v{tt+1}, 0xffff0000, v{u}"))
            else:
                fill.add(lambda tt=tt, sDc=sDc, xf=xf: k(f"v_fma_f32 v{tt}, s{sDc}, v{tt}, v{xf}"))
                fill.add(lambda tt=tt, sDc=sDc, xf=xf: k(f"v_fma_f32 v{tt+1}, s{sDc}, v{tt+1}, v{xf+1}"))
    nm = 0
    pend = []
    for a in range(32):
        while nk <= a: kload(nk); nk += 1
        k.wait_vm(("k", a))
        for t in range(7, -1, -1):
            b = 4 * t - a + 3
            if b < 0: continue
            if a < 4: k.wait_lg(("b", b))
            c = "0" if a == 0 else vr(acc + 4 * t, 4)
            k(f"v_mfma_f32_16x16x32_bf16 {vr(acc+4*t,4)}, {ar(Af+4*a,4)}, {vr(Bf+4*b,4)}, {c}")
            nm += 1
            if b == 0: pend.append((nm + 4, t))
            if nb < 32: bread()
            elif nm % 4 == 0 and nk < 32: kload(nk); nk += 1
            elif pend and pend[0][0] <= nm:
                tt = pend.pop(0)[1]
                k.lds_op(f"ds_write_b128 v{vpw}, {vr(acc+4*tt,4)} offset:{1152*tt}", "pw")
            else: fill.pop(1)
    k.stamp()
    fill.flush()
    for _, tt in pend:
        k.lds_op(f"ds_write_b128 v{vpw}, {vr(acc+4*tt,4)} offset:{1152*tt}", "pw")
    k.wait_lg_all()
    k("s_barrier")
    k.stamp()
    Y = Bf
    for c in range(2):
        for p in range(2):
            for h in range(2):
                k.lds_op(f"ds_read_b128 {vr(Y+c*16+p*8+h*4,4)}, v{vpr} offset:{L_P + (2*c+p)*9216 + h*256}", ("y", c))
    k(f"s_mul_i32 s{st0}, s2, 384")
    for c in range(2):
        k.wait_lg(("y", c))
        y = Y + c * 16
        for j in range(4): k(f"v_pk_add_f32 {vr(y+2*j,2)}, {vr(y+2*j,2)}, {vr(y+8+2*j,2)}")
        if exact:
            for rnd_add in (T + c * 8, XF + c * 8):
                for j in range(4): k(f"v_cvt_pk_bf16_f32 v{tmp+j}, v{y+2*j}, v{y+2*j+1}")
                for j in range(4):
                    k(f"v_lshlrev_b32 v{y+2*j}, 16, v{tmp+j}")
                    k(f"v_and_b32 v{y+2*j+1}, 0xffff0000, v{tmp+j}")
                for j in range(4): k(f"v_pk_add_f32 {vr(y+2*j,2)}, {vr(y+2*j,2)}, {vr(rnd_add+2*j,2)}")
        else:
            for j in range(4): k(f"v_pk_add_f32 {vr(y+2*j,2)}, {vr(y+2*j,2)}, {vr(T+c*8+2*j,2)}")
        for j in range(4): k(f"v_cvt_pk_bf16_f32 v{X+c*4+j}, v{y+2*j}, v{y+2*j+1}")
        k(f"buffer_store_dwordx4 {vr(X+c*4,4)}, v{vout}, s[{rO}:{rO+3}], s{st0} offen offset:{192*c}")
    k.stamp()
    k.stamp_flush(WS, slot, sw)
    k(f"{name}_end:\ns_endpgm")
    return k
```

```python
from asmgen import *
from layout import *
import math

def make_g1(name, XB, D=6, RB=(0, 2, 5, 8, 11), slot=2):
    k = K(name, 248, 512, vgpr=None, sgpr=None, agpr=None)
    L_ST = 98304
    k.lds = L_ST + 8192
    k.ns = 3; k.nv = 1
    lane = k.v(); sw = k.s()
    WS = k.s(2)
    rX, rW, rH = [k.s(4) for _ in range(3)]
    st0, st1, stl, sg, srb, su, swo, sone = [k.s() for _ in range(8)]
    sinv, seps = k.s(2), k.s(2)
    t0, t1 = k.v(), k.v()
    vo16, vtr0, vtr1, vst = [k.v() for _ in range(4)]
    SS = k.v(4, 4); SQ = k.v(4, 4); tmp = k.v(8, 4)
    XF = k.v(24, 4)
    acc = k.v(48, 4)
    Wf = k.a(132, 4)
    k.stamp(real=True); k.stamp()
    k(f"""
    s_cmp_ge_u32 s2, 248
    s_cbranch_scc1 {name}_end
    s_load_dwordx2 s[{WS}:{WS+1}], s[0:1], 104
    s_and_b32 s{st0}, s2, 7
    s_mul_i32 s{stl}, s{st0}, 31
    s_lshr_b32 s{st0}, s2, 3
    s_add_u32 s{stl}, s{stl}, s{st0}
    s_cmp_ge_u32 s{stl}, 242
    s_cbranch_scc1 {name}_end
    v_and_b32 v{lane}, 63, v0
    v_lshrrev_b32 v{t0}, 6, v0
    v_readfirstlane_b32 s{sw}, v{t0}
    v_lshlrev_b32 v{vo16}, 4, v{lane}
    s_cmp_ge_u32 s{stl}, 88
    s_cselect_b32 s{st0}, 88, 0
    s_cselect_b32 s{sg}, 4, 0
    s_sub_u32 s{st0}, s{stl}, s{st0}
    s_and_b32 s{st1}, s{st0}, 3
    s_add_u32 s{sg}, s{sg}, s{st1}
    s_lshr_b32 s{srb}, s{st0}, 2
    s_cmp_lt_u32 s{stl}, 176
    s_cbranch_scc1 {name}_dec
    s_sub_u32 s{st0}, s{stl}, 176
    s_mul_i32 s{srb}, s{st0}, 43
    s_lshr_b32 s{srb}, s{srb}, 7
    s_mul_i32 s{st1}, s{srb}, 3
    s_sub_u32 s{sg}, s{st0}, s{st1}
    s_add_u32 s{sg}, s{sg}, 8
    {name}_dec:
    s_lshl_b32 s{su}, s{sg}, 3
    s_add_u32 s{su}, s{su}, s{sw}
    s_mul_i32 s{swo}, s{su}, {33*1024}
    s_mul_i32 s{st0}, s{srb}, 98304
    s_add_u32 s{st0}, s{st0}, {XB}
    s_lshl_b32 m0, s{sw}, 10
    s_waitcnt lgkmcnt(0)
    """)
    k.stamp()
    k.srd(rX, WS, f"s{st0}", 98304)
    k.srd(rW, WS, W1F, W1F_SZ)
    avail = [8 * (r + 1) // 3 for r in RB]
    items = [(ks, 1, ("w", ks)) for ks in range(33)]
    prev_r, prev_av = -1, 0
    for R, av in zip(RB, avail):
        nj = prev_av - 1
        for r in range(prev_r + 1, R + 1):
            items.append((nj - 2 * (R - r), 0, ("x", r)))
        prev_r, prev_av = R, av
    items.sort(key=lambda x: (x[0], x[1], x[2][1]))
    xs = [it[2][1] for it in items if it[2][0] == "x"]; assert xs == sorted(xs)
    pos = 0
    def issue():
        nonlocal pos
        tag = items[pos][2]; pos += 1
        if tag[0] == "x":
            k.vmem(f"buffer_load_dwordx4 v{vo16}, s[{rX}:{rX+3}], m0 offen lds", tag)
            if tag[1] < 11: k("s_add_u32 m0, m0, 8192")
        else:
            ks = tag[1]
            k.vmem(f"buffer_load_dwordx4 {ar(Wf+4*ks,4)}, v{vo16}, s[{rW}:{rW+3}], s{swo} offen offset:{(ks%4)*1024}", tag)
            if ks % 4 == 3: k(f"s_add_u32 s{swo}, s{swo}, 4096")
    def issue_upto(t, maxn=99):
        n = 0
        while pos < len(items) and items[pos][0] <= t and n < maxn: issue(); n += 1
    issue_upto(D - 1)
    k.srd(rH, WS, HF, HF_SZ)
    k(f"""
    v_lshrrev_b32 v{t0}, 5, v{lane}
    v_lshlrev_b32 v{t0}, 3, v{t0}
    v_bfe_u32 v{t1}, v{lane}, 2, 2
    v_add_u32 v{t0}, v{t0}, v{t1}
    v_mul_u32_u24 v{vtr0}, 192, v{t0}
    v_bfe_u32 v{t1}, v{lane}, 4, 1
    v_lshl_add_u32 v{vtr0}, v{t1}, 5, v{vtr0}
    v_and_b32 v{t1}, 3, v{lane}
    v_lshl_add_u32 v{vtr0}, v{t1}, 3, v{vtr0}
    v_add_u32 v{vtr1}, {16*3072}, v{vtr0}
    v_add_u32 v{vst}, {L_ST}, v{vo16}
    s_mov_b32 s{sone}, 0x3f803f80
    s_mov_b32 s{sinv}, {f32(1/512)}
    s_mov_b32 s{sinv+1}, {f32(1/512)}
    s_mov_b32 s{seps}, {f32(1e-5)}
    s_mov_b32 s{seps+1}, {f32(1e-5)}
    """)
    for j in range(4): k(f"v_mov_b32 v{SS+j}, 0\nv_mov_b32 v{SQ+j}, 0")
    nbar = 0
    def ensure(ks):
        nonlocal nbar
        while nbar < len(RB) and ks >= (avail[nbar - 1] if nbar else 0):
            k.wait_vm(("x", RB[nbar]))
            if nbar == 0: k("s_waitcnt lgkmcnt(0)")
            k("s_barrier")
            nbar += 1
    def reads(ks):
        base = vtr0 if ks < 16 else vtr1
        out = []
        for nt in range(3):
            for c in range(2):
                d = XF + (ks % 2) * 12 + nt * 4 + 2 * c
                out.append((f"ds_read_b64_tr_b16 {vr(d,2)}, v{base} offset:{(ks%16)*3072 + c*768 + nt*64}", ("f", ks, nt)))
        return out
    ensure(0)
    k.stamp()
    for ins, tag in reads(0): k.lds_op(ins, tag)
    for ks in range(32):
        nxt = []
        if ks == 16: k.stamp()
        if ks + 1 < 32:
            ensure(ks + 1)
            nxt = reads(ks + 1)
        k.wait_vm(("w", ks))
        for nt in range(3):
            k.wait_lg(("f", ks, nt))
            c = "0" if ks == 0 else vr(acc + 16 * nt, 16)
            k(f"v_mfma_f32_32x32x16_bf16 {vr(acc+16*nt,16)}, {ar(Wf+4*ks,4)}, {vr(XF+(ks%2)*12+nt*4,4)}, {c}")
            for ins, tag in nxt[2 * nt: 2 * nt + 2]: k.lds_op(ins, tag)
            issue_upto(ks + D, 1)
        issue_upto(ks + D)
        lab = k.label("sk")
        k(f"s_cmp_lg_u32 s{sw}, {ks % 8}\ns_cbranch_scc1 {lab}")
        for j in range(4):
            for nt in range(3):
                x = XF + (ks % 2) * 12 + nt * 4 + j
                k(f"v_dot2c_f32_bf16 v{SS+nt}, s{sone}, v{x}")
                k(f"v_dot2c_f32_bf16 v{SQ+nt}, v{x}, v{x}")
        k(f"{lab}:")
    assert pos == len(items)
    k.stamp()
    k("s_nop 2")
    for nt in range(3): k(f"v_permlane32_swap_b32 v{SS+nt}, v{SQ+nt}")
    for nt in range(3): k(f"v_add_f32 v{SS+nt}, v{SS+nt}, v{SQ+nt}")
    k(f"s_lshl_b32 s{st0}, s{sw}, 10")
    k(f"v_add_u32 v{t0}, s{st0}, v{vst}")
    k(f"ds_write_b128 v{t0}, {vr(SS,4)}")
    k("s_waitcnt lgkmcnt(0)\ns_barrier")
    k(f"s_cmp_ge_u32 s{su}, 86\ns_cbranch_scc1 {name}_end")
    RD = tmp; assert XF == tmp + 8
    for w in range(8): k(f"ds_read_b128 {vr(RD+4*w,4)}, v{vst} offset:{w*1024}")
    k("s_waitcnt lgkmcnt(0)")
    for st in (16, 8, 4):
        for j in range(0, st, 2): k(f"v_pk_add_f32 {vr(RD+j,2)}, {vr(RD+j,2)}, {vr(RD+j+st,2)}")
    for nt in range(3): k(f"v_mov_b32 v{SS+nt}, v{RD+nt}\nv_mov_b32 v{SQ+nt}, v{RD+nt}")
    for nt in range(3): k(f"v_permlane32_swap_b32 v{SS+nt}, v{SQ+nt}")
    k.stamp()
    MB = XF
    for nt in range(3): k(f"v_mov_b32 v{MB+4*nt+2}, 0\nv_mov_b32 v{MB+4*nt+3}, 0")
    k(f"""
    s_mul_i32 s{st0}, s{srb}, {3*86*1024}
    s_lshl_b32 s{st1}, s{su}, 10
    s_add_u32 s{st0}, s{st0}, s{st1}
    s_waitcnt lgkmcnt(0)
    """)
    for i in (0, 2): k(f"v_pk_mul_f32 {vr(SS+i,2)}, {vr(SS+i,2)}, {sr(sinv,2)}")
    for nt in range(3): k(f"v_cvt_pk_bf16_f32 v{MB+4*nt}, v{SS+nt}, v{SS+nt}")
    for nt in range(3): k(f"v_and_b32 v{MB+4*nt+1}, 0xffff, v{MB+4*nt}")
    for i in (0, 2): k(f"v_pk_mul_f32 {vr(SQ+i,2)}, {vr(SQ+i,2)}, {sr(sinv,2)}")
    k.wait_vm(("w", 32))
    for nt in range(3):
        k(f"v_mfma_f32_32x32x16_bf16 {vr(acc+16*nt,16)}, {ar(Wf+128,4)}, {vr(MB+4*nt,4)}, {vr(acc+16*nt,16)}")
    for i in (0, 2): k(f"v_pk_fma_f32 {vr(SQ+i,2)}, {vr(SS+i,2)}, {vr(SS+i,2)}, {vr(SQ+i,2)} neg_lo:[1,0,0] neg_hi:[1,0,0]")
    def rnd():
        for i in (0, 2): k(f"v_cvt_pk_bf16_f32 v{tmp+i}, v{SQ+i}, v{SQ+i+1}")
        k(f"v_lshlrev_b32 v{SQ}, 16, v{tmp}\nv_and_b32 v{SQ+1}, 0xffff0000, v{tmp}\nv_lshlrev_b32 v{SQ+2}, 16, v{tmp+2}")
    rnd()
    for nt in range(3): k(f"v_max_f32 v{SQ+nt}, 0, v{SQ+nt}")
    for i in (0, 2): k(f"v_pk_add_f32 {vr(SQ+i,2)}, {vr(SQ+i,2)}, {sr(seps,2)}")
    rnd()
    for nt in range(3): k(f"v_sqrt_f32 v{SQ+nt}, v{SQ+nt}")
    rnd()
    C0 = -2 * LOG2E * math.sqrt(2 / math.pi); C1 = C0 * 0.044715
    c0r = XF + 12; c1r = XF + 16; s2 = XF + 20
    for nt in range(3): k(f"v_rcp_f32 v{SS+nt}, v{SQ+nt}")
    for nt in range(3): k(f"v_mul_f32 v{s2+nt}, v{SQ+nt}, v{SQ+nt}")
    for nt in range(3): k(f"v_mul_f32 v{c0r+nt}, {f32(C0)}, v{SS+nt}")
    for nt in range(3): k(f"v_mul_f32 v{c1r+nt}, v{SS+nt}, v{SS+nt}")
    for nt in range(3): k(f"v_mul_f32 v{SQ+nt}, {f32(C1)}, v{SS+nt}")
    for nt in range(3): k(f"v_mul_f32 v{c1r+nt}, v{c1r+nt}, v{SQ+nt}")
    for nt in range(3):
        a = acc + 16 * nt
        for j in range(8): k(f"v_mul_f32 v{tmp+j}, v{a+j}, v{a+j}")
        for j in range(8): k(f"v_fma_f32 v{tmp+j}, v{tmp+j}, v{c1r+nt}, v{c0r+nt}")
        for j in range(8): k(f"v_mul_f32 v{tmp+j}, v{tmp+j}, v{a+j}")
        for j in range(8):
            k(f"v_exp_f32 v{tmp+j}, v{tmp+j}")
            k(f"v_mul_f32 v{a+j}, v{a+j}, v{a+8+j}")
        for j in range(8): k(f"v_fma_f32 v{tmp+j}, v{tmp+j}, v{s2+nt}, v{s2+nt}")
        for j in range(8): k(f"v_rcp_f32 v{tmp+j}, v{tmp+j}")
        for j in range(8): k(f"v_mul_f32 v{a+j}, v{a+j}, v{tmp+j}")
        for j in range(4): k(f"v_cvt_pk_bf16_f32 v{a+8+j}, v{a+2*j}, v{a+2*j+1}")
        k(f"buffer_store_dwordx4 {vr(a+8,4)}, v{vo16}, s[{rH}:{rH+3}], s{st0} offen")
        if nt < 2: k(f"s_add_u32 s{st0}, s{st0}, {86*1024}")
    k.stamp()
    k.stamp_flush(WS, slot, sw)
    k(f"{name}_end:\ns_endpgm")
    return k
```

```python
from asmgen import *
from layout import *

def make_g2(name, XB, final, XT=None, ST=None, RING=8, PRE=5, slot=3):
    k = K(name, 256, 256, vgpr=None, sgpr=None, agpr=None)
    RS = 272
    SLAB = 64 * RS
    L_R = 4 * SLAB
    L_RI = L_R + 8192
    RIS = 144
    k.lds = L_R + (8192 + 64 * RIS if final else 0)
    k.ns = 3; k.nv = 1
    lane = k.v(); sw = k.s()
    WS = k.s(2); pO = k.s(2)
    rH, rW, rX, rO, rS = [k.s(4) for _ in range(5)]
    st0, st1, sa, sb, su, sbig = [k.s() for _ in range(6)]
    t0, t1, t2 = k.v(), k.v(), k.v()
    vo0, vo1, vpw, vpr, vres, vout = [k.v() for _ in range(6)]
    RES = k.v(8, 4)
    acc = k.v(64, 4)
    F = k.a(16 * RING, 4)
    NS = 22
    k.stamp(real=True); k.stamp()
    k(f"""
    s_cmp_ge_u32 s2, 256
    s_cbranch_scc1 {name}_end
    s_load_dwordx2 s[{WS}:{WS+1}], s[0:1], 104
    s_load_dwordx2 s[{pO}:{pO+1}], s[0:1], 88
    v_and_b32 v{lane}, 63, v0
    v_lshrrev_b32 v{t0}, 6, v0
    v_readfirstlane_b32 s{sw}, v{t0}
    v_lshlrev_b32 v{vo0}, 4, v{lane}
    v_add_u32 v{vo1}, {86*1024}, v{vo0}
    s_and_b32 s{st0}, s2, 7
    s_lshl_b32 s{sa}, s{st0}, 2
    s_bfe_u32 s{st0}, s2, 0x20003
    s_add_u32 s{sa}, s{sa}, s{st0}
    s_lshr_b32 s{sb}, s2, 5
    s_lshl_b32 s{su}, s{sw}, 10
    s_mul_i32 s{st0}, s{sa}, {2*86*1024}
    s_add_u32 s{st0}, s{st0}, {HF}
    s_mul_i32 s{st1}, s{sb}, {2*86*1024}
    s_add_u32 s{st1}, s{st1}, {W2F}
    ; residual address: lc = 8a + (lane&7); rb = lc/12; rb*98304 + (lc%12)*16 + row*192
    v_and_b32 v{t0}, 7, v{lane}
    v_lshl_add_u32 v{t0}, s{sa}, 3, v{t0}
    v_mul_u32_u24 v{t1}, 171, v{t0}
    v_lshrrev_b32 v{t1}, 11, v{t1}
    v_mul_u32_u24 v{t1}, {98304-192}, v{t1}
    v_lshl_add_u32 v{vres}, v{t0}, 4, v{t1}
    v_lshrrev_b32 v{t2}, 3, v{lane}
    v_mul_u32_u24 v{t1}, 192, v{t2}
    v_add_u32 v{vres}, v{vres}, v{t1}
    s_waitcnt lgkmcnt(0)
    """)
    k.stamp()
    k.srd(rH, WS, f"s{st0}", 2 * 86 * 1024)
    k.srd(rW, WS, f"s{st1}", 2 * 86 * 1024)
    k.srd(rX, WS, XB, XB_SZ)
    def loads(s):
        if s == NS - 1:
            k(f"s_cmp_ge_u32 s{sw}, 2\ns_cselect_b32 s{su}, 0x7000000, s{su}")
        f = F + 16 * (s % RING)
        k.vmem(f"buffer_load_dwordx4 {ar(f,4)}, v{vo0}, s[{rH}:{rH+3}], s{su} offen", ("f", s, 0))
        k.vmem(f"buffer_load_dwordx4 {ar(f+8,4)}, v{vo0}, s[{rW}:{rW+3}], s{su} offen", ("f", s, 1))
        k.vmem(f"buffer_load_dwordx4 {ar(f+12,4)}, v{vo1}, s[{rW}:{rW+3}], s{su} offen", ("f", s, 2))
        k.vmem(f"buffer_load_dwordx4 {ar(f+4,4)}, v{vo1}, s[{rH}:{rH+3}], s{su} offen", ("f", s, 3))
        if s < NS - 1: k(f"s_add_u32 s{su}, s{su}, 4096")
    loads(0)
    if not final:
        k(f"""
        s_lshl_b32 s{st0}, s{sb}, 3
        s_add_u32 s{st0}, s{st0}, s{sw}
        s_mul_i32 s{st0}, s{st0}, {8*192}
        s_add_u32 s{st1}, s{st0}, {32*192}
        """)
        k.vmem(f"buffer_load_dwordx4 {vr(RES,4)}, v{vres}, s[{rX}:{rX+3}], s{st0} offen", "res")
        k.vmem(f"buffer_load_dwordx4 {vr(RES+4,4)}, v{vres}, s[{rX}:{rX+3}], s{st1} offen", "res")
    else:
        k(f"""
        s_lshl_b32 s{st0}, s{sb}, 2
        s_add_u32 s{st0}, s{st0}, s{sw}
        s_mul_i32 s{st0}, s{st0}, {16*192}
        s_add_u32 s{st1}, s{st0}, {8*192}
        s_lshl_b32 s{sbig}, s{sw}, 11
        s_add_u32 m0, s{sbig}, {L_R}
        """)
        k.vmem(f"buffer_load_dwordx4 v{vres}, s[{rX}:{rX+3}], s{st0} offen lds", "res")
        k("s_add_u32 m0, m0, 1024")
        k.vmem(f"buffer_load_dwordx4 v{vres}, s[{rX}:{rX+3}], s{st1} offen lds", "res")
    for s in range(1, PRE): loads(s)
    k(f"""
    v_and_b32 v{t0}, 31, v{lane}
    v_mul_u32_u24 v{t0}, {RS}, v{t0}
    v_lshrrev_b32 v{t1}, 5, v{lane}
    v_lshl_add_u32 v{t0}, v{t1}, 4, v{t0}
    s_mul_i32 s{st0}, s{sw}, {SLAB}
    v_add_u32 v{vpw}, s{st0}, v{t0}
    v_lshrrev_b32 v{t2}, 3, v0                 ; 8w + lane>>3
    v_mul_u32_u24 v{t0}, {RS}, v{t2}
    v_and_b32 v{t1}, 7, v{lane}
    v_lshl_add_u32 v{vpr}, v{t1}, 5, v{t0}
    """)
    if not final:
        k.srd(rO, WS, XT, 2097152)
        k.srd(rS, WS, ST, 0x4000)
        k(f"""
        v_lshlrev_b32 v{t0}, 12, v{t2}
        v_lshl_add_u32 v{vout}, v{t1}, 4, v{t0}
        """)
    else:
        k.srd(rO, pO, 0, 2097152)
        k(f"""
        v_lshlrev_b32 v{t0}, 10, v{t2}
        v_lshl_add_u32 v{vout}, v{t1}, 4, v{t0}
        v_mul_u32_u24 v{t0}, {RIS}, v{t2}
        v_lshl_add_u32 v{RES}, v{t1}, 4, v{t0}
        v_add_u32 v{RES}, {L_RI}, v{RES}
        v_bfe_u32 v{t0}, v{lane}, 2, 2
        v_lshlrev_b32 v{t0}, 7, v{t0}
        v_lshrrev_b32 v{t1}, 4, v{lane}
        v_lshl_add_u32 v{t0}, v{t1}, 5, v{t0}
        v_and_b32 v{t1}, 3, v{lane}
        v_lshl_add_u32 v{t0}, v{t1}, 3, v{t0}
        s_add_u32 s{sbig}, s{sbig}, {L_R}
        v_add_u32 v{RES+1}, s{sbig}, v{t0}
        v_mul_u32_u24 v{t0}, {RIS}, v{lane}
        s_lshl_b32 s{st0}, s{sw}, 5
        s_add_u32 s{st0}, s{st0}, {L_RI}
        v_add_u32 v{RES+2}, s{st0}, v{t0}
        """)
        TR = k.v(8, 4)
    nl = PRE
    for s in range(NS):
        f = F + 16 * (s % RING)
        hA, hB, wA, wB = f, f + 4, f + 8, f + 12
        seq = [(hA, wA, 0, 0, 1), (hA, wB, 0, 1, 2), (hB, wB, 1, 1, 3), (hB, wA, 1, 0, 3)]
        for i, (h, w, lt, dt, need) in enumerate(seq):
            k.wait_vm(("f", s, need))
            ai = acc + 16 * (2 * lt + dt)
            c = "0" if s == 0 else vr(ai, 16)
            A_, B_ = (w, h) if final else (h, w)
            k(f"v_mfma_f32_32x32x16_bf16 {vr(ai,16)}, {ar(A_,4)}, {ar(B_,4)}, {c}")
        if s in (0, 10): k.stamp()
        if nl < NS: loads(nl); nl += 1
        if s == 0 and nl < NS and nl < RING: pass
        if final and s == 1:
            for c in range(4): k.lds_op(f"ds_read_b64_tr_b16 {vr(TR+2*c,2)}, v{RES+1} offset:{c*512}", "tr")
        if final and s == 2:
            k.wait_lg_all()
            k(f"ds_write_b128 v{RES+2}, {vr(TR,4)}")
            k(f"ds_write_b128 v{RES+2}, {vr(TR+4,4)} offset:16")
    k.stamp()
    for lt, dt in ((0, 0), (0, 1), (1, 1), (1, 0)):
        ai = acc + 16 * (2 * lt + dt)
        rowt, colt = (lt, dt) if final else (dt, lt)
        for q in range(4):
            k(f"ds_write_b128 v{vpw}, {vr(ai+4*q,4)} offset:{rowt*32*RS + colt*128 + q*32}")
    k("s_waitcnt lgkmcnt(0)\ns_barrier")
    k.stamp()
    Y = acc
    for it in range(2):
        for sl in range(4):
            for h in range(2):
                k.lds_op(f"ds_read_b128 {vr(Y+it*32+sl*8+h*4,4)}, v{vpr} offset:{sl*SLAB + it*32*RS + h*16}", ("y", it, sl))
        if final:
            k.lds_op(f"ds_read_b128 {vr(TR+4*it,4)}, v{RES} offset:{it*32*RIS}", ("y", it, 4))
    if final:
        k(f"s_lshl_b32 s{st0}, s{sa}, 16\ns_lshl_b32 s{st1}, s{sb}, 7\ns_add_u32 s{st0}, s{st0}, s{st1}\ns_add_u32 s{st1}, s{st0}, {32*1024}")
        RR = TR
    else:
        k(f"s_lshl_b32 s{st0}, s{sb}, 18\ns_lshl_b32 s{st1}, s{sa}, 7\ns_add_u32 s{st0}, s{st0}, s{st1}\ns_add_u32 s{st1}, s{st0}, {32*4096}")
        RR = RES
    for it in range(2):
        y = Y + it * 32
        k.wait_lg(("y", it, 1))
        for j in range(4): k(f"v_pk_add_f32 {vr(y+2*j,2)}, {vr(y+2*j,2)}, {vr(y+8+2*j,2)}")
        k.wait_lg(("y", it, 4 if final else 3))
        for j in range(4): k(f"v_pk_add_f32 {vr(y+16+2*j,2)}, {vr(y+16+2*j,2)}, {vr(y+24+2*j,2)}")
        for j in range(4): k(f"v_pk_add_f32 {vr(y+2*j,2)}, {vr(y+2*j,2)}, {vr(y+16+2*j,2)}")
        for j in range(4): k(f"v_cvt_pk_bf16_f32 v{y+8+j}, v{y+2*j}, v{y+2*j+1}")
        for j in range(4):
            k(f"v_lshlrev_b32 v{y+16+2*j}, 16, v{RR+4*it+j}")
            k(f"v_and_b32 v{y+16+2*j+1}, 0xffff0000, v{RR+4*it+j}")
        for j in range(4):
            k(f"v_lshlrev_b32 v{y+2*j}, 16, v{y+8+j}")
            k(f"v_and_b32 v{y+2*j+1}, 0xffff0000, v{y+8+j}")
        for j in range(4): k(f"v_pk_add_f32 {vr(y+2*j,2)}, {vr(y+2*j,2)}, {vr(y+16+2*j,2)}")
        for j in range(4): k(f"v_cvt_pk_bf16_f32 v{y+8+j}, v{y+2*j}, v{y+2*j+1}")
        k(f"buffer_store_dwordx4 {vr(y+8,4)}, v{vout}, s[{rO}:{rO+3}], s{st1 if it else st0} offen")
    if not final:
        for it in range(2):
            y = Y + it * 32
            for j in range(4):
                k(f"v_lshlrev_b32 v{y+2*j}, 16, v{y+8+j}")
                k(f"v_and_b32 v{y+2*j+1}, 0xffff0000, v{y+8+j}")
        Sm = Y + 16; Sq = Y + 24; y0 = Y; y1 = Y + 32
        for j in range(4): k(f"v_pk_add_f32 {vr(Sm+2*j,2)}, {vr(y0+2*j,2)}, {vr(y1+2*j,2)}")
        for j in range(4): k(f"v_pk_mul_f32 {vr(Sq+2*j,2)}, {vr(y0+2*j,2)}, {vr(y0+2*j,2)}")
        for j in range(4): k(f"v_pk_fma_f32 {vr(Sq+2*j,2)}, {vr(y1+2*j,2)}, {vr(y1+2*j,2)}, {vr(Sq+2*j,2)}")
        for e in range(8): k(f"v_permlane32_swap_b32 v{Sm+e}, v{Sq+e}")
        for j in range(4): k(f"v_pk_add_f32 {vr(Sm+2*j,2)}, {vr(Sm+2*j,2)}, {vr(Sq+2*j,2)}")
        for e in range(4): k(f"v_permlane16_swap_b32 v{Sm+e}, v{Sm+4+e}")
        for j in range(2): k(f"v_pk_add_f32 {vr(Sm+2*j,2)}, {vr(Sm+2*j,2)}, {vr(Sm+4+2*j,2)}")
        for e in range(4): k(f"v_add_f32_dpp v{Sm+e}, v{Sm+e}, v{Sm+e} row_ror:8 row_mask:0xf bank_mask:0xf")
        k(f"""
        v_and_b32 v{t0}, 8, v{lane}
        v_cmp_ne_u32 vcc, 0, v{t0}
        v_lshrrev_b32 v{t1}, 5, v{lane}
        v_lshlrev_b32 v{t1}, 13, v{t1}
        v_add_u32 v{t1}, v{t1}, v{t0}
        v_and_b32 v{t0}, 16, v{lane}
        v_add_u32 v{t1}, v{t1}, v{t0}
        v_and_b32 v{t0}, 7, v{lane}
        v_lshl_add_u32 v{t1}, v{t0}, 5, v{t1}
        v_cndmask_b32 v{Sm}, v{Sm}, v{Sm+2}, vcc
        v_cndmask_b32 v{Sm+1}, v{Sm+1}, v{Sm+3}, vcc
        s_lshl_b32 s{st0}, s{sa}, 8
        buffer_atomic_add_f32 v{Sm}, v{t1}, s[{rS}:{rS+3}], s{st0} offen
        buffer_atomic_add_f32 v{Sm+1}, v{t1}, s[{rS}:{rS+3}], s{st0} offen offset:4
        """)
    k.stamp()
    k.stamp_flush(WS, slot, sw)
    k(f"{name}_end:\ns_endpgm")
    return k
```

```python
from asmgen import *
from layout import *
import math

def stamp(k, slot, which, sW=None):
    pass

def make_prep(name="prep_kernel"):
    NMAIN, NW1, NW2 = 256, 86, 43
    k = K(name, NMAIN + NW1 + NW2, 512, vgpr=None, sgpr=None, agpr=0)
    L_XT = 0
    L_PAR = 8192
    L_TAB = 12288
    TABSZ = 6656
    L_PART = 12288 + 2 * TABSZ
    k.lds = L_PART + 32768
    k.ns = 3
    k.nv = 1
    lane = k.v();
    sw = k.s()
    P = k.s(16, 4)
    Q = k.s(8, 4)
    WS = k.s(2)
    k.stamp(real=True); k.stamp()
    k(f"""
    s_load_dwordx16 s[{P}:{P+15}], s[0:1], 0
    s_load_dwordx2 s[{WS}:{WS+1}], s[0:1], 104
    s_load_dwordx8 s[{Q}:{Q+7}], s[0:1], 64
    v_and_b32 v{lane}, 63, v0
    v_lshrrev_b32 v2, 6, v0
    v_readfirstlane_b32 s{sw}, v2
    s_cmp_ge_u32 s2, {NMAIN}
    s_cbranch_scc1 {name}_notmain
    """)
    nv0, ns0 = k.nv, k.ns
    pU, pLA, pAI, pCR, pCI, pDT = P, P+2, P+4, P+6, P+8, P+10
    rU, rLA, rAI, rCR, rCI, rXT, rST, rKR = [k.s(4) for _ in range(8)]
    sch, sp, st0, st1, st2, sdt, ssd, ssu, stab = [k.s() for _ in range(9)]
    t0, t1, t2, t3 = k.v(), k.v(), k.v(), k.v()
    tm = k.v(16, 4)
    vla, vai, vcr, vci, vcr2, vci2 = range(tm, tm + 6)
    vrow = tm + 8
    vxt = tm + 12
    vo_n, vo_x, vo_r, vo_c = [k.v() for _ in range(4)]
    k(f"""
    s_lshr_b32 s{st0}, s{sw}, 2
    s_lshl_b32 s{sch}, s2, 1
    s_add_u32 s{sch}, s{sch}, s{st0}          ; channel
    s_and_b32 s{sp}, s{sw}, 3
    s_mul_i32 s{stab}, s{st0}, {TABSZ}
    s_add_u32 s{stab}, s{stab}, {L_TAB}
    ; offsets
    v_and_b32 v{vo_n}, 31, v{lane}
    v_lshlrev_b32 v{vo_n}, 1, v{vo_n}          ; (lane&31)*2
    v_lshlrev_b32 v{vo_c}, 2, v{lane}          ; lane*4
    v_lshrrev_b32 v{t0}, 3, v{lane}
    v_lshlrev_b32 v{t0}, 10, v{t0}
    v_and_b32 v{t1}, 7, v{lane}
    v_lshl_add_u32 v{vo_x}, v{t1}, 4, v{t0}
    v_lshlrev_b32 v{vo_r}, 4, v{lane}
    s_lshl_b32 s{st1}, s2, 2
    s_waitcnt lgkmcnt(0)
    s_load_dword s{sdt}, s[{pDT}:{pDT+1}], s{st1}
    """)
    k.stamp()
    k.srd(rLA, pLA, 0, 131072); k.srd(rAI, pAI, 0, 131072); k.srd(rCR, pCR, 0, 131072); k.srd(rCI, pCI, 0, 131072)
    k.srd(rU, pU, 0, 2097152)
    k(f"""
    s_lshl_b32 s{st0}, s{sch}, 8               ; ch*256
    s_lshl_b32 s{st1}, s{sp}, 6
    s_add_u32 s{st1}, s{st1}, s{st0}           ; ch*256 + p*64
    buffer_load_ushort v{vla}, v{vo_n}, s[{rLA}:{rLA+3}], s{st1} offen
    buffer_load_dword v{vcr2}, v{vo_c}, s[{rCR}:{rCR+3}], s{st0} offen
    buffer_load_dword v{vci2}, v{vo_c}, s[{rCI}:{rCI+3}], s{st0} offen
    buffer_load_ushort v{vai}, v{vo_n}, s[{rAI}:{rAI+3}], s{st1} offen
    buffer_load_ushort v{vcr}, v{vo_n}, s[{rCR}:{rCR+3}], s{st1} offen
    buffer_load_ushort v{vci}, v{vo_n}, s[{rCI}:{rCI+3}], s{st1} offen
    s_lshr_b32 s{st0}, s2, 3
    s_lshl_b32 s{st0}, s{st0}, 16
    s_lshl_b32 s{st1}, s{sw}, 13
    s_add_u32 s{st0}, s{st0}, s{st1}
    s_and_b32 s{st1}, s2, 7
    s_lshl_b32 s{st1}, s{st1}, 7
    s_add_u32 s{st0}, s{st0}, s{st1}
    s_lshl_b32 s{st1}, s{sw}, 10
    s_add_u32 m0, s{st1}, {L_XT}
    buffer_load_dwordx4 v{vo_x}, s[{rU}:{rU+3}], s{st0} offen lds
    s_lshl_b32 s{st2}, s2, 3
    s_add_u32 s{st2}, s{st2}, s{sw}
    s_lshl_b32 s{st0}, s{st2}, 10
    buffer_load_dwordx4 v[{vrow}:{vrow+3}], v{vo_r}, s[{rU}:{rU+3}], s{st0} offen
    """)
    k.srd(rXT, WS, XT0, 2097152)
    k.srd(rST, WS, ST1, 0x8000)
    k.srd(rKR, WS, KR, 512 * KR_CH)
    vi, vq, pc, pf = [k.v() for _ in range(4)]
    wa = k.v(4); ga = k.v(9)
    def Pfun(dst, src, ta, tb):
        k(f"""
        v_subrev_u32 v{ta}, 7, v{src}
        v_lshlrev_b32 v{ta}, 7, v{ta}
        v_subrev_u32 v{tb}, 10, v{src}
        v_lshlrev_b32 v{tb}, 9, v{tb}
        v_cmp_eq_u32 vcc, 15, v{src}
        v_max3_i32 v{dst}, v{src}, v{ta}, v{tb}
        v_mov_b32 v{ta}, 516
        v_cndmask_b32 v{dst}, v{dst}, v{ta}, vcc
        """)
    k(f"""
    v_and_b32 v{vi}, 15, v{lane}
    v_lshrrev_b32 v{vq}, 4, v{lane}
    """)
    Pfun(pc, vi, t0, t1)
    k(f"""
    v_cvt_f32_u32 v{pc}, v{pc}
    v_lshlrev_b32 v{pf}, 3, v{vi}
    v_cvt_f32_u32 v{pf}, v{pf}
    ; t3 = tab + 20*(16p + n')
    s_mul_i32 s{st0}, s{sp}, 320
    s_add_u32 s{st0}, s{st0}, s{stab}
    v_mul_u32_u24 v{t3}, 20, v{vi}
    v_add_u32 v{t3}, s{st0}, v{t3}
    """)
    for r in range(4):
        k(f"v_lshl_add_u32 v{t2}, v{vq}, 2, {r}")
        Pfun(wa + r, t2, t0, t1)
        k(f"""
        v_lshrrev_b32 v{t0}, 3, v{wa+r}
        v_lshl_add_u32 v{wa+r}, v{wa+r}, 1, v{t3}
        v_lshl_add_u32 v{wa+r}, v{t0}, 2, v{wa+r}
        """)
    vj = k.v(); vo_k = k.v()
    k(f"""
    v_and_b32 v{vj}, 255, v0
    v_lshlrev_b32 v{vo_k}, 4, v{vj}
    v_lshlrev_b32 v{t0}, 3, v{vj}
    v_sub_u32 v{t0}, 2047, v{t0}
    v_cvt_f32_u32 v{t0}, v{t0}
    """)
    for e in range(0, 10, 2):
        k(f"""
        v_add_f32 v{t1}, {f32(-float(e))}, v{t0}
        v_add_f32 v{t2}, {f32(-float(e+1))}, v{t0}
        v_max_f32 v{t1}, 0, v{t1}
        v_cvt_pk_bf16_f32 v{t1}, v{t1}, v{t2}
        v_and_b32 v{t2}, 0xffff0000, v{t1}
        v_lshlrev_b32 v{t1}, 16, v{t1}
        """)
        for ee, tt in ((e, t1), (e + 1, t2)):
            if ee > 8: continue
            k(f"""
            v_cvt_u32_f32 v{tt}, v{tt}
            v_lshrrev_b32 v{t3}, 3, v{tt}
            v_lshl_add_u32 v{ga+ee}, v{tt}, 1, s{stab}
            v_lshl_add_u32 v{ga+ee}, v{t3}, 2, v{ga+ee}
            """)
    zz = k.v(4)
    skr = k.s()
    k(f"""
    s_mul_i32 s{skr}, s{sch}, {KR_CH}
    v_mov_b32 v{zz}, 0
    v_mov_b32 v{zz+1}, 0
    v_mov_b32 v{zz+2}, 0
    v_mov_b32 v{zz+3}, 0
    v_lshrrev_b32 v{t0}, 1, v{lane}
    v_mul_u32_u24 v{t0}, {KR_CP}, v{t0}
    v_and_b32 v{t1}, 1, v{lane}
    v_lshl_add_u32 v{t0}, v{t1}, 4, v{t0}
    v_add_u32 v{t0}, 4096, v{t0}
    s_mov_b64 exec, 15
    buffer_store_dwordx4 v[{zz}:{zz+3}], v{t0}, s[{rKR}:{rKR+3}], s{skr} offen
    s_mov_b64 exec, -1
    """)
    vtr, vxo = k.v(), k.v()
    k(f"""
    v_lshrrev_b32 v{t0}, 2, v{vi}              ; r
    v_lshl_add_u32 v{t0}, v{vq}, 3, v{t0}      ; 8g + r
    v_lshlrev_b32 v{t0}, 7, v{t0}              ; *128
    v_and_b32 v{t1}, 3, v{vi}
    v_lshl_add_u32 v{vtr}, v{t1}, 3, v{t0}
    s_lshr_b32 s{st0}, s{sw}, 2
    s_lshl_b32 s{st0}, s{st0}, 12              ; lbase*128
    s_lshl_b32 s{st1}, s{sp}, 5                ; dblock*2
    s_add_u32 s{st0}, s{st0}, s{st1}
    v_add_u32 v{vtr}, s{st0}, v{vtr}
    v_lshlrev_b32 v{vxo}, 12, v{vi}
    v_lshl_add_u32 v{vxo}, v{vq}, 4, v{vxo}
    s_and_b32 s{st0}, s2, 7
    s_lshl_b32 s{st0}, s{st0}, 2
    s_add_u32 s{st0}, s{st0}, s{sp}
    s_lshl_b32 s{st0}, s{st0}, 16              ; (4*(wg&7)+p)*16*4096
    s_lshr_b32 s{st1}, s2, 3
    s_lshl_b32 s{st1}, s{st1}, 7
    s_add_u32 s{st0}, s{st0}, s{st1}
    s_lshr_b32 s{st1}, s{sw}, 2
    s_lshl_b32 s{st1}, s{st1}, 6
    s_add_u32 s{st0}, s{st0}, s{st1}
    s_waitcnt vmcnt(1) lgkmcnt(0)
    s_barrier
    ds_read_b64_tr_b16 v[{vxt}:{vxt+1}], v{vtr} offset:{L_XT}
    ds_read_b64_tr_b16 v[{vxt+2}:{vxt+3}], v{vtr} offset:{L_XT+512}
    """)
    k.stamp()
    A = k.v(4, 4); B = k.v(16, 4); acc = k.v(16, 4)
    par = acc; vdt = acc + 4; vfs = k.v()
    sA, sB = k.s(), k.s()
    k(f"""
    ; dt
    s_lshr_b32 s{st1}, s{sw}, 2
    s_lshl_b32 s{st1}, s{st1}, 4
    s_lshr_b32 s{sdt}, s{sdt}, s{st1}
    s_lshl_b32 s{sdt}, s{sdt}, 16
    v_mov_b32 v{t0}, {f32(LOG2E)}
    v_mul_f32 v{vdt}, s{sdt}, v{t0}
    v_lshlrev_b32 v{vla}, 16, v{vla}
    v_mul_f32 v{vla}, v{vla}, v{t0}
    v_exp_f32 v{vdt}, v{vdt}
    v_exp_f32 v{vla}, v{vla}
    ; max |C|
    v_and_b32 v{vcr2}, 0x7fff7fff, v{vcr2}
    v_and_b32 v{vci2}, 0x7fff7fff, v{vci2}
    v_pk_max_u16 v{vcr2}, v{vcr2}, v{vci2}
    v_cvt_pk_bf16_f32 v{vdt}, v{vdt}, v{vla}
    v_lshrrev_b32 v{vci2}, 16, v{vcr2}
    v_and_b32 v{vcr2}, 0xffff, v{vcr2}
    v_max_u32 v{vcr2}, v{vcr2}, v{vci2}
    v_and_b32 v{vla}, 0xffff0000, v{vdt}
    v_lshlrev_b32 v{vdt}, 16, v{vdt}
    v_max_u32_dpp v{vcr2}, v{vcr2}, v{vcr2} row_ror:8 row_mask:0xf bank_mask:0xf
    v_mul_f32 v{vla}, v{vla}, v{vdt}
    v_lshlrev_b32 v{vai}, 16, v{vai}
    v_max_u32_dpp v{vcr2}, v{vcr2}, v{vcr2} row_ror:4 row_mask:0xf bank_mask:0xf
    v_mul_f32 v{par}, {f32(-LOG2E)}, v{vla}
    v_mul_f32 v{vai}, v{vai}, v{vdt}
    v_max_u32_dpp v{vcr2}, v{vcr2}, v{vcr2} row_ror:2 row_mask:0xf bank_mask:0xf
    v_mul_f32 v{par+1}, {f32(1/(2*math.pi))}, v{vai}
    v_lshlrev_b32 v{vcr}, 16, v{vcr}
    v_max_u32_dpp v{vcr2}, v{vcr2}, v{vcr2} row_ror:1 row_mask:0xf bank_mask:0xf
    v_lshlrev_b32 v{vci}, 16, v{vci}
    s_waitcnt lgkmcnt(0)
    buffer_store_dwordx4 v[{vxt}:{vxt+3}], v{vxo}, s[{rXT}:{rXT+3}], s{st0} offen
    v_readlane_b32 s{sA}, v{vcr2}, 0
    v_readlane_b32 s{sB}, v{vcr2}, 16
    v_readlane_b32 s{st0}, v{vcr2}, 32
    v_readlane_b32 s{st1}, v{vcr2}, 48
    s_max_u32 s{sA}, s{sA}, s{sB}
    s_max_u32 s{st0}, s{st0}, s{st1}
    s_max_u32 s{sA}, s{sA}, s{st0}
    s_lshr_b32 s{sA}, s{sA}, 7
    s_max_u32 s{sA}, s{sA}, 1
    s_min_u32 s{sA}, s{sA}, 253
    s_lshl_b32 s{ssu}, s{sA}, 23
    s_sub_u32 s{ssd}, 254, s{sA}
    s_lshl_b32 s{ssd}, s{ssd}, 23
    v_mul_f32 v{par+2}, s{ssd}, v{vcr}
    v_mul_f32 v{par+3}, s{ssd}, v{vci}
    v_add_f32 v{vfs}, v{vdt}, v{vdt}
    v_mul_f32 v{vfs}, s{ssu}, v{vfs}
    s_lshl_b32 s{st0}, s{sw}, 9
    s_add_u32 s{st0}, s{st0}, {L_PAR}
    v_lshl_add_u32 v{t0}, v{vo_n}, 3, s{st0}
    ds_write_b128 v{t0}, v[{par}:{par+3}]
    v_lshl_add_u32 v{t1}, v{vq}, 6, s{st0}
    """)
    pr = k.v(32)
    k("s_waitcnt lgkmcnt(0)")
    for s in range(2):
        for e in range(4):
            b = pr + (s * 4 + e) * 4
            k(f"ds_read_b128 v[{b}:{b+3}], v{t1} offset:{s*256 + e*16}")
    ss, sq = acc + 5, acc + 6
    sone = k.s()
    k(f"""
    s_mov_b32 s{sone}, 0x3f803f80
    v_mov_b32 v{ss}, 0
    v_mov_b32 v{sq}, 0
    """)
    for j in range(4):
        k(f"v_dot2c_f32_bf16 v{ss}, s{sone}, v{vrow+j}")
        k(f"v_dot2c_f32_bf16 v{sq}, v{vrow+j}, v{vrow+j}")
    k(f"""
    v_permlane32_swap_b32 v{ss}, v{sq}
    v_add_f32 v{ss}, v{ss}, v{sq}
    v_add_f32_dpp v{ss}, v{ss}, v{ss} row_ror:8 row_mask:0xf bank_mask:0xf
    v_add_f32_dpp v{ss}, v{ss}, v{ss} row_ror:4 row_mask:0xf bank_mask:0xf
    v_add_f32_dpp v{ss}, v{ss}, v{ss} row_ror:2 row_mask:0xf bank_mask:0xf
    v_add_f32_dpp v{ss}, v{ss}, v{ss} row_ror:1 row_mask:0xf bank_mask:0xf
    v_mov_b32 v{sq}, v{ss}
    v_permlane16_swap_b32 v{ss}, v{sq}
    v_add_f32 v{ss}, v{ss}, v{sq}
    v_and_b32 v{t0}, 1, v{vq}
    v_cmp_eq_u32 vcc, 1, v{t0}
    v_lshlrev_b32 v{t0}, 14, v{t0}
    v_lshrrev_b32 v{t2}, 1, v{vq}
    v_lshl_add_u32 v{t0}, v{t2}, 13, v{t0}
    v_cndmask_b32 v{ss}, v{ss}, v{zz}, vcc
    s_lshl_b32 s{st2}, s{st2}, 2
    s_mov_b32 exec_lo, 0x00010001
    s_mov_b32 exec_hi, 0x00010001
    buffer_store_dword v{ss}, v{t0}, s[{rST}:{rST+3}], s{st2} offen
    s_mov_b64 exec, -1
    s_waitcnt lgkmcnt(0)
    """)
    k.stamp()
    for s in range(2):
        for e in range(4):
            b = pr + (s * 4 + e) * 4
            a_, i_, cr_, ci_ = b, b + 1, b + 2, b + 3
            x1, p1, x2, p2, c1, s1, c2, s2, m1, m2, m3, u1, u2, u3 = range(tm, tm + 14)
            Ad = A + e
            Bd = [B + nt * 4 + e for nt in range(4)]
            k(f"""
            v_mul_f32 v{p1}, v{i_}, v{pc}
            v_mul_f32 v{p2}, v{i_}, v{pf}
            v_mul_f32 v{x1}, v{a_}, v{pc}
            v_mul_f32 v{x2}, v{a_}, v{pf}
            v_fract_f32 v{p1}, v{p1}
            v_fract_f32 v{p2}, v{p2}
            v_exp_f32 v{x1}, v{x1}
            v_exp_f32 v{x2}, v{x2}
            v_cos_f32 v{c1}, v{p1}
            v_sin_f32 v{s1}, v{p1}
            v_cos_f32 v{c2}, v{p2}
            v_sin_f32 v{s2}, v{p2}
            v_mul_f32 v{c1}, v{x1}, v{c1}
            v_mul_f32 v{s1}, v{x1}, v{s1}
            v_mul_f32 v{c2}, v{x2}, v{c2}
            v_mul_f32 v{s2}, v{x2}, v{s2}
            v_cvt_pk_f16_f32 v{Ad}, v{c1}, -v{s1}
            v_mul_f32 v{x1}, v{cr_}, v{c2}
            v_mul_f32 v{x2}, v{cr_}, v{s2}
            v_fma_f32 v{x1}, -v{ci_}, v{s2}, v{x1}
            v_fma_f32 v{x2}, v{ci_}, v{c2}, v{x2}
            v_mov_b32_dpp v{m1}, v{Ad} row_newbcast:8 row_mask:0xf bank_mask:0xf
            v_mov_b32_dpp v{m2}, v{Ad} row_newbcast:9 row_mask:0xf bank_mask:0xf
            v_mov_b32_dpp v{m3}, v{Ad} row_newbcast:10 row_mask:0xf bank_mask:0xf
            v_cvt_pk_f16_f32 v{Bd[0]}, v{x1}, v{x2}
            v_pk_mul_f16 v{u1}, v{Bd[0]}, v{m1} op_sel:[0,0] op_sel_hi:[1,0]
            v_pk_mul_f16 v{u2}, v{Bd[0]}, v{m2} op_sel:[0,0] op_sel_hi:[1,0]
            v_pk_mul_f16 v{u3}, v{Bd[0]}, v{m3} op_sel:[0,0] op_sel_hi:[1,0]
            v_pk_fma_f16 v{Bd[1]}, v{Bd[0]}, v{m1}, v{u1} op_sel:[1,1,0] op_sel_hi:[0,1,1] neg_hi:[1,0,0]
            v_pk_fma_f16 v{Bd[2]}, v{Bd[0]}, v{m2}, v{u2} op_sel:[1,1,0] op_sel_hi:[0,1,1] neg_hi:[1,0,0]
            v_pk_fma_f16 v{Bd[3]}, v{Bd[0]}, v{m3}, v{u3} op_sel:[1,1,0] op_sel_hi:[0,1,1] neg_hi:[1,0,0]
            """)
        for nt in range(4):
            c = "0" if s == 0 else vr(acc + nt * 4, 4)
            k(f"v_mfma_f32_16x16x32_f16 {vr(acc+nt*4,4)}, {vr(A,4)}, {vr(B+nt*4,4)}, {c}")
    k(f"""
    s_lshl_b32 s{st0}, s{sw}, 12
    s_add_u32 s{st0}, s{st0}, {L_PART}
    v_add_u32 v{t0}, s{st0}, v{vo_r}
    s_lshr_b32 s{st0}, s{sw}, 2
    s_lshl_b32 s{st0}, s{st0}, 14
    s_lshl_b32 s{st1}, s{sp}, 10
    s_add_u32 s{st0}, s{st0}, s{st1}
    s_add_u32 s{st0}, s{st0}, {L_PART}
    v_add_u32 v{t1}, s{st0}, v{vo_r}
    """)
    k.stamp()
    for nt in range(4):
        k(f"ds_write_b128 v{t0}, {vr(acc+nt*4,4)} offset:{nt*1024}")
    k("s_waitcnt lgkmcnt(0)\ns_barrier")
    for pp in range(4):
        k(f"ds_read_b128 {vr(B+pp*4,4)}, v{t1} offset:{pp*4096}")
    k("s_waitcnt lgkmcnt(2)")
    for r in range(4): k(f"v_add_f32 v{B+r}, v{B+r}, v{B+4+r}")
    k("s_waitcnt lgkmcnt(0)")
    for r in range(4): k(f"v_add_f32 v{B+8+r}, v{B+8+r}, v{B+12+r}")
    for r in range(4): k(f"v_add_f32 v{B+r}, v{B+r}, v{B+8+r}")
    for r in range(4): k(f"v_mul_f32 v{B+r}, v{B+r}, v{vfs}")
    k(f"""
    v_cvt_pk_bf16_f32 v{B}, v{B}, v{B+1}
    v_cvt_pk_bf16_f32 v{B+2}, v{B+2}, v{B+3}
    ds_write_b16_d16_hi v{wa+3}, v{B+2}
    s_mov_b32 exec_hi, 0xffff0000
    ds_write_b16 v{wa}, v{B}
    ds_write_b16_d16_hi v{wa+1}, v{B}
    ds_write_b16 v{wa+2}, v{B+2}
    s_mov_b32 exec_hi, -1
    s_waitcnt lgkmcnt(0)
    s_barrier
    """)
    for e in range(9): k(f"ds_read_u16 v{tm+e}, v{ga+e}")
    O = acc; E = acc + 4
    k(f"""
    v_cmp_eq_u32 vcc, 255, v{vj}
    s_waitcnt lgkmcnt(0)
    v_cndmask_b32 v{tm+8}, v{tm+8}, v{zz}, vcc
    """)
    for j in range(4):
        k(f"v_lshl_or_b32 v{O+j}, v{tm+2*j+1}, 16, v{tm+2*j}")
    k(f"buffer_store_dwordx4 {vr(O,4)}, v{vo_k}, s[{rKR}:{rKR+3}], s{skr} offen")
    for j in range(4):
        k(f"v_lshl_or_b32 v{E+j}, v{tm+2*j+2}, 16, v{tm+2*j+1}")
    k(f"s_add_u32 s{skr}, s{skr}, {KR_CP}")
    k(f"buffer_store_dwordx4 {vr(E,4)}, v{vo_k}, s[{rKR}:{rKR+3}], s{skr} offen")
    k.stamp()
    k.stamp_flush(WS, 0, sw)
    k("s_endpgm")
    nvmax, nsmax = k.nv, k.ns
    k.nv, k.ns = nv0, ns0
    k(f"""
    {name}_notmain:
    s_cmp_ge_u32 s2, {NMAIN+NW1}
    s_cbranch_scc1 {name}_notw1
    """)
    rW, rO = k.s(4), k.s(4)
    sidx, smat, sfb, st0, st1, sone, slb = [k.s() for _ in range(7)]
    sb = k.s(2)
    t0, t1, vo, vtr, vso, vcs = [k.v() for _ in range(6)]
    fr = k.v(16, 4)
    k(f"""
    s_sub_u32 s{sidx}, s2, {NMAIN}
    s_and_b32 s{smat}, s{sidx}, 1
    s_lshr_b32 s{sfb}, s{sidx}, 1
    v_lshrrev_b32 v{t0}, 2, v{lane}
    v_mul_u32_u24 v{t0}, 2752, v{t0}
    v_and_b32 v{t1}, 3, v{lane}
    v_lshl_add_u32 v{vo}, v{t1}, 4, v{t0}
    s_mul_i32 s{st0}, s{sw}, {64*2752}
    s_lshl_b32 s{st1}, s{sfb}, 6
    s_add_u32 s{st0}, s{st0}, s{st1}
    s_lshl_b32 s{slb}, s{sw}, 12
    s_waitcnt lgkmcnt(0)
    s_cmp_eq_u32 s{smat}, 0
    s_cselect_b32 s{sb}, s{Q}, s{Q+2}
    s_cselect_b32 s{sb+1}, s{Q+1}, s{Q+3}
    """)
    k.srd(rW, sb, 0, 512 * 2752)
    for i in range(4):
        k(f"s_add_u32 m0, s{slb}, {i*1024}")
        k(f"buffer_load_dwordx4 v{vo}, s[{rW}:{rW+3}], s{st0} offen lds")
        if i < 3: k(f"s_add_u32 s{st0}, s{st0}, {16*2752}")
    k.srd(rO, WS, W1F, W1F_SZ)
    k(f"""
    v_lshrrev_b32 v{t0}, 5, v{lane}            ; hl
    v_lshlrev_b32 v{vtr}, 9, v{t0}
    v_bfe_u32 v{t1}, v{lane}, 2, 2             ; r
    v_lshl_add_u32 v{vtr}, v{t1}, 6, v{vtr}
    v_bfe_u32 v{t1}, v{lane}, 4, 1             ; un
    v_lshl_add_u32 v{vtr}, v{t1}, 5, v{vtr}
    v_mul_u32_u24 v{vso}, {33*1024}, v{t1}
    v_lshl_add_u32 v{vso}, v{t0}, 9, v{vso}    ; + 32hl*16
    v_and_b32 v{t1}, 1, v{lane}
    v_lshl_add_u32 v{vtr}, v{t1}, 4, v{vtr}
    v_bfe_u32 v{t1}, v{lane}, 1, 1
    v_lshl_add_u32 v{vtr}, v{t1}, 3, v{vtr}
    v_add_u32 v{vtr}, s{slb}, v{vtr}
    v_and_b32 v{t1}, 15, v{lane}
    v_lshl_add_u32 v{vso}, v{t1}, 4, v{vso}
    s_mul_i32 s{st0}, s{sfb}, {2*33*1024}
    s_lshl_b32 s{st1}, s{smat}, 8
    s_add_u32 s{st0}, s{st0}, s{st1}
    s_add_u32 s{st1}, s{st0}, s{slb}
    s_mov_b32 s{sone}, 0x3f803f80
    v_mov_b32 v{vcs}, 0
    s_waitcnt vmcnt(0)
    """)
    for i in range(4):
        for c in range(2):
            k(f"ds_read_b64_tr_b16 {vr(fr+i*4+2*c,2)}, v{vtr} offset:{i*1024+c*256}")
    for i in range(4):
        k(f"s_waitcnt lgkmcnt({6-2*i})")
        k(f"buffer_store_dwordx4 {vr(fr+i*4,4)}, v{vso}, s[{rO}:{rO+3}], s{st1} offen offset:{i*1024}")
        for j in range(4): k(f"v_dot2c_f32_bf16 v{vcs}, s{sone}, v{fr+i*4+j}")
    L_RED = 32768
    k(f"""
    v_lshlrev_b32 v{t0}, 2, v0
    ds_write_b32 v{t0}, v{vcs} offset:{L_RED}
    s_waitcnt lgkmcnt(0)
    s_barrier
    s_cmp_lg_u32 s{sw}, 0
    s_cbranch_scc1 {name}_end
    v_and_b32 v{t0}, 31, v{lane}
    v_lshlrev_b32 v{t0}, 2, v{t0}
    """)
    rd = k.v(16)
    for j in range(16): k(f"ds_read_b32 v{rd+j}, v{t0} offset:{L_RED + j*128}")
    k("s_waitcnt lgkmcnt(0)")
    for st in (8, 4, 2, 1):
        for j in range(st): k(f"v_add_f32 v{rd+j}, v{rd+j}, v{rd+j+st}")
    o = k.v(4, 4)
    k(f"""
    v_sub_f32 v{rd}, 0, v{rd}
    v_cvt_pk_bf16_f32 v{rd+1}, v{rd}, v{rd}
    v_and_b32 v{rd+2}, 0xffff0000, v{rd+1}
    v_sub_f32 v{rd+3}, v{rd}, v{rd+2}          ; r1
    v_cvt_pk_bf16_f32 v{o}, v{rd}, v{rd+3}
    v_and_b32 v{rd+2}, 0xffff0000, v{o}
    v_sub_f32 v{rd+3}, v{rd+3}, v{rd+2}        ; r2
    v_mov_b32 v{o+2}, 0
    v_mov_b32 v{o+3}, 0
    v_cvt_pk_bf16_f32 v{o+1}, v{rd+3}, v{o+2}
    s_mov_b32 exec_lo, 0
    v_mov_b32 v{o}, 0
    v_mov_b32 v{o+1}, 0
    s_mov_b32 exec_lo, -1
    s_add_u32 s{st0}, s{st0}, {32*1024}
    buffer_store_dwordx4 {vr(o,4)}, v{vso}, s[{rO}:{rO+3}], s{st0} offen
    s_endpgm
    """)
    nvmax, nsmax = max(nvmax, k.nv), max(nsmax, k.ns)
    k.nv, k.ns = nv0, ns0
    k(f"""
    {name}_notw1:
    s_cmp_ge_u32 s2, {NMAIN+NW1+NW2}
    s_cbranch_scc1 {name}_end
    """)
    rW, rO = k.s(4), k.s(4)
    sidx, st0, st1, slb = [k.s() for _ in range(4)]
    t0, t1, vo, vtr, vso = [k.v() for _ in range(5)]
    fr = k.v(16, 4)
    k(f"""
    s_sub_u32 s{sidx}, s2, {NMAIN+NW1}
    v_lshrrev_b32 v{t0}, 3, v{lane}
    v_lshlrev_b32 v{t0}, 10, v{t0}
    v_and_b32 v{t1}, 7, v{lane}
    v_lshl_add_u32 v{vo}, v{t1}, 4, v{t0}
    s_lshl_b32 s{st0}, s{sidx}, 15
    s_lshl_b32 s{st1}, s{sw}, 7
    s_add_u32 s{st0}, s{st0}, s{st1}
    s_lshl_b32 s{slb}, s{sw}, 12
    s_waitcnt lgkmcnt(0)
    """)
    k.srd(rW, Q + 4, 0, 1376 * 1024)
    for i in range(4):
        k(f"s_add_u32 m0, s{slb}, {i*1024}")
        k(f"buffer_load_dwordx4 v{vo}, s[{rW}:{rW+3}], s{st0} offen lds")
        if i < 3: k(f"s_add_u32 s{st0}, s{st0}, 8192")
    k.srd(rO, WS, W2F, W2F_SZ)
    k(f"""
    v_lshrrev_b32 v{t0}, 5, v{lane}
    v_lshlrev_b32 v{vtr}, 10, v{t0}
    v_bfe_u32 v{t1}, v{lane}, 2, 2
    v_lshl_add_u32 v{vtr}, v{t1}, 7, v{vtr}
    v_bfe_u32 v{t1}, v{lane}, 4, 1
    v_lshl_add_u32 v{vtr}, v{t1}, 5, v{vtr}
    v_and_b32 v{t1}, 3, v{lane}
    v_lshl_add_u32 v{vtr}, v{t1}, 3, v{vtr}
    v_add_u32 v{vtr}, s{slb}, v{vtr}
    v_lshlrev_b32 v{vso}, 4, v{lane}
    s_mul_i32 s{st0}, s{sw}, {2*86*1024}
    s_lshl_b32 s{st1}, s{sidx}, 11
    s_add_u32 s{st0}, s{st0}, s{st1}
    s_add_u32 s{st1}, s{st0}, {86*1024}
    s_waitcnt vmcnt(0)
    """)
    for dtl in range(2):
        for un in range(2):
            i = dtl * 2 + un
            for c in range(2):
                k(f"ds_read_b64_tr_b16 {vr(fr+i*4+2*c,2)}, v{vtr} offset:{un*2048+c*512+dtl*64}")
    for dtl in range(2):
        for un in range(2):
            i = dtl * 2 + un
            k(f"s_waitcnt lgkmcnt({6-2*i})")
            k(f"buffer_store_dwordx4 {vr(fr+i*4,4)}, v{vso}, s[{rO}:{rO+3}], s{st1 if dtl else st0} offen offset:{un*1024}")
    k(f"{name}_end:\ns_endpgm")
    k.nv, k.ns = max(nvmax, k.nv), max(nsmax, k.ns)
    return k
```

```python
import sys
from asmgen import *
from layout import *
from k_prep import make_prep
from k_conv import make_conv
from k_g1 import make_g1
from k_g2 import make_g2
HDR = open("interleave_layers__ssm_conv_s4d__glu_gated_geglu__prompt.s.ref").read().split("; Override launch")[0]
HDR = "\n".join(l[2:] if l.startswith("; ") else l[1:] for l in HDR.strip().split("\n"))
def build(path, upto=99):
    ks = [make_prep(), make_conv("conv1_kernel", XT0, ST1, XB1), make_g1("g1a_kernel", XB1), make_g2("g2a_kernel", XB1, False, XT2, ST2),
          make_conv("conv2_kernel", XT2, ST2, XB3, slot=4), make_g1("g1b_kernel", XB3, slot=5), make_g2("g2b_kernel", XB3, True, slot=6)]
    emit(path, ks, ks[:upto], HDR)
    for k in ks: print(k.name, "vgpr", k.nv, "agpr", k.na, "sgpr", k.ns, "lds", k.lds, "nops", k.inserted, "lines", len(k.lines))
if __name__ == "__main__":
    build("full.s")
    K.diag = True
    build("diag.s")
```

```python
import hazard
HEADER = """.amdgcn_target "amdgcn-amd-amdhsa--gfx950"
.text
"""
class K:
    def __init__(self, name, grid, block, lds=0, vgpr=256, sgpr=102, accum=None, agpr=0, fix=True):
        self.name = name; self.grid = grid; self.block = block; self.lds = lds
        self.vgpr = vgpr; self.sgpr = sgpr; self.accum = accum; self.agpr = agpr
        self.lines = []
        self._lab = 0; self.fix = fix
        self.nv = 0; self.ns = 0; self.na = 0
        self.issued = set()
        self.vm = []
        self.lg = []
    def __call__(self, s):
        for ln in s.split("\n"):
            ln = ln.strip()
            if ln: self.lines.append("    " + ln if not ln.endswith(":") else ln)
    def label(self, base="L"):
        self._lab += 1
        return f"{self.name}_{base}{self._lab}"
    def v(self, n=1, al=None):
        al = al or (1 if n == 1 else 2 if n < 4 else 4)
        self.nv = (self.nv + al - 1) // al * al
        r = self.nv; self.nv += n; return r
    def a(self, n=1, al=None):
        al = al or (1 if n == 1 else 2 if n < 4 else 4)
        self.na = (self.na + al - 1) // al * al
        r = self.na; self.na += n; return r
    def s(self, n=1, al=None):
        al = al or (1 if n == 1 else 2 if n < 4 else 4)
        self.ns = (self.ns + al - 1) // al * al
        r = self.ns; self.ns += n; return r
    def vmem(self, instr, tag=None):
        self(instr); self.vm.append(tag); self.issued.add(tag)
    def wait_vm(self, tag):
        assert tag in self.issued, tag
        idx = max(i for i, t in enumerate(self.vm) if t == tag) if tag in self.vm else -1
        if idx < 0: return
        n = len(self.vm) - 1 - idx
        assert n <= 63, n
        self(f"s_waitcnt vmcnt({n})")
        self.vm = self.vm[idx + 1:]
    def wait_vm_all(self):
        self("s_waitcnt vmcnt(0)"); self.vm = []
    def lds_op(self, instr, tag=None):
        self(instr); self.lg.append(tag)
    def wait_lg(self, tag):
        idx = max(i for i, t in enumerate(self.lg) if t == tag) if tag in self.lg else -1
        if idx < 0: return
        n = len(self.lg) - 1 - idx
        if n > 15: n = 15
        self(f"s_waitcnt lgkmcnt({n})")
        self.lg = self.lg[len(self.lg) - n:] if n else []
    def wait_lg_all(self):
        self("s_waitcnt lgkmcnt(0)"); self.lg = []
    def srd(self, d, base, off, size):
        if off == 0:
            self(f"s_mov_b32 s{d}, s{base}\ns_mov_b32 s{d+1}, s{base+1}")
        else:
            o = off if isinstance(off, str) else hex(off)
            self(f"s_add_u32 s{d}, s{base}, {o}\ns_addc_u32 s{d+1}, s{base+1}, 0")
        sz = size if isinstance(size, str) else hex(size)
        self(f"s_mov_b32 s{d+2}, {sz}\ns_mov_b32 s{d+3}, 0x20000")
    diag = False
    def stamp(self, real=False):
        if not K.diag: return
        if not hasattr(self, "nst"): self.nst = 0
        assert self.nst < 10
        b = 80 + 2 * self.nst; self.nst += 1
        self(f"{'s_memrealtime' if real else 's_memtime'} s[{b}:{b+1}]")
    def stamp_flush(self, WS, slot, sw):
        if not K.diag: return
        from layout import TS
        self("s_waitcnt vmcnt(0)")
        self.stamp(); self.stamp(real=True)
        self("s_waitcnt lgkmcnt(0)")
        self.srd(76, WS, TS + slot * 0x40000, 0x40000)
        self(f"s_lshl_b32 s100, s2, 3\ns_add_u32 s100, s100, s{sw}\ns_lshl_b32 s100, s100, 6\nv_mov_b32 v0, 0\ns_mov_b64 exec, 1")
        for i in range(self.nst):
            self(f"v_mov_b32 v1, s{80+2*i}\nbuffer_store_dword v1, v0, s[76:79], s100 offen offset:{4*i}")
        self.sgpr = 102
    def text(self):
        out = [f".globl {self.name}", ".p2align 8", f".type {self.name},@function", f"{self.name}:"]
        lines = self.lines
        if self.fix:
            lines, n = hazard.fix(lines)
            self.inserted = n
        out += lines
        return "\n".join(out) + "\n"
    def desc(self):
        vg = self.vgpr if self.vgpr else self.nv
        ag = self.agpr if self.agpr is not None else self.na
        sg = self.sgpr if self.sgpr else self.ns
        assert vg <= 256 and ag <= 256 and sg <= 102, (vg, ag, sg)
        accum = (vg + 3) // 4 * 4
        nfv = accum + ag if ag else vg
        return f""".p2align 6
.amdhsa_kernel {self.name}
  .amdhsa_next_free_vgpr {nfv}
  .amdhsa_next_free_sgpr {sg}
  .amdhsa_accum_offset {accum}
  .amdhsa_group_segment_fixed_size 0
  .amdhsa_kernarg_size 112
  .amdhsa_user_sgpr_count 2
  .amdhsa_user_sgpr_kernarg_segment_ptr 1
  .amdhsa_system_sgpr_workgroup_id_x 1
  .amdhsa_float_denorm_mode_32 3
  .amdhsa_float_denorm_mode_16_64 3
.end_amdhsa_kernel
"""
def vr(b, n=1): return f"v{b}" if n == 1 else f"v[{b}:{b+n-1}]"
def ar(b, n=1): return f"a{b}" if n == 1 else f"a[{b}:{b+n-1}]"
def sr(b, n=1): return f"s{b}" if n == 1 else f"s[{b}:{b+n-1}]"
def f32(x):
    import struct
    return hex(struct.unpack("<I", struct.pack("<f", x))[0])
def emit(path, kernels, order, comment=""):
    s = ""
    for ln in comment.split("\n"):
        if ln.strip(): s += "; " + ln.rstrip() + "\n"
    for k in order:
        g, b = k.grid, k.block
        s += f"; @launch kernel={k.name} grid=({g},1,1) block=({b},1,1) lds={k.lds}\n"
    s += HEADER
    for k in kernels: s += k.text()
    s += '.section .rodata,"a"\n'
    for k in kernels: s += k.desc()
    open(path, "w").write(s)
```

```python
XA0   = 0x0000000
XA2   = 0x0200000
XB1   = 0x0400000
XB3   = 0x0700000
XB_H  = 11 * 98304
KR    = 0x0A00000
KR_CP = 4224; KR_CH = 8448
ST0   = 0x0F00000
CNT   = 0x0F20000
CNT_G = CNT + 65536
ST2   = CNT + 0x18000
W1F   = 0x1000000
W2F   = 0x1400000
H1    = 0x1800000
H2    = 0x1E00000
TS    = 0x2800000
WS_SZ = 0x10000000
BIG   = 0x7FF00000
LOG2E = 1.4426950408889634
```

```python
import sys, math
from asmgen import *
from mlayout import *
from k_conv import ln_finalize_pairs

KNAME = "interleave_layers__ssm_conv_s4d__glu_gated_geglu__prompt_kernel"
SC = "sc1"

def make(diag=False, exact=True, opt=None):
    opt = opt or {}
    k = K(KNAME, 256, 256, lds=163840, vgpr=256, sgpr=102, agpr=256)
    N = "mk"
    k.ns = 3
    sw = k.s()
    rWS, rOUT, rT = k.s(4), k.s(4), k.s(4)
    sinv, seps = k.s(2), k.s(2)
    (sLayer, sXB, sH, sCnt, sko, srb, su, sa, sb, sone, sTO, sArr, sPol, sG1,
     st0, st1, st2, st3, sx, sw2, sGc, spl, sar, shl, sw3, sres, sout, sk16) = [k.s() for _ in range(28)]
    sStampA, sStampB, sIdx = k.s(2), k.s(2), k.s(2)
    P = k.s(16, 4); Q = k.s(8, 4)
    rA, rB = k.s(4), k.s(4)
    (sch, sp, sc_, sdt, sDs, ssd, ssu, stask, sIsW2, sWsrc, sWdst, sW2b) = [k.s() for _ in range(12)]
    k.nv = 1
    lane = k.v()
    (vo16, vt16, vcx, vcs, vcu, vko, vbo, vpw, vpr, vcout, vD, vst, vpw2, vpr2, vres, varr, varr1, vpol, vpv, vone, vstamp,
     vw2b, t0, t1, t2, t3) = [k.v() for _ in range(26)]
    vkr = vpw2
    vtr = k.v(4)
    assert k.nv <= 32, k.nv
    RV = 32; POOL = 84
    CX, CS1, CS2 = 244, 248, 252
    aW1 = 0; aCOR = 128; RA = 132
    def Rreg(i): return ar(RA + 4 * i, 4) if i < 31 else vr(RV + 4 * (i - 31), 4)
    L_KHI = 32768; L_KLO = 98304; L_S2 = 27648
    W = f"s[{rWS}:{rWS+3}]"
    UB = 4608; L_P = 2 * UB; PW = 4608
    L_X = 32768; L_ST = 131072

    names = [[], []]; cur = [0]
    def stamp(name):
        if not diag: return
        names[cur[0]].append(name)
        k(f"s_memtime s[{sStampA}:{sStampA+1}]\ns_mov_b64 exec, s[{sIdx}:{sIdx+1}]\ns_waitcnt lgkmcnt(0)\nv_mov_b32 v{vstamp}, s{sStampA}\ns_mov_b64 exec, -1\ns_lshl_b64 s[{sIdx}:{sIdx+1}], s[{sIdx}:{sIdx+1}], 1")
        k.lg = []
    nl = [0]
    def lab(b):
        nl[0] += 1; return f"{N}_{b}{nl[0]}"
    slow = []
    def arrive(soff, group=False, srd=W):
        k.vmem(f"buffer_atomic_add v{vone}, v{varr1 if group else varr}, {srd}, {soff} offen {SC}", "arr")
    def poll_ins(soff, group, srd, va):
        return (f"buffer_load_dword v{vpv}, off, {srd}, {soff} {SC}" if group else f"buffer_load_dword v{vpv}, v{va}, {srd}, {soff} offen {SC}")
    def poll_issue(soff, group=False, srd=W, va=vpol):
        k.vmem(poll_ins(soff, group, srd, va), "poll")
    def poll_check(soff, target, group=False, srd=W, va=vpol, sleep=None):
        Ls, Lo, Lt = lab("ps"), lab("po"), lab("pt")
        k.wait_vm("poll")
        k(f"v_cmp_gt_u32 vcc, {target}, v{vpv}\ns_cbranch_vccnz {Ls}\n{Lo}:")
        slow.append(f"""
        {Ls}:
        s_sub_u32 s{sTO}, s{sTO}, 1
        s_cbranch_scc1 {Lt}
        s_sleep {sleep or opt.get("sleep", 8)}
        {poll_ins(soff, group, srd, va)}
        s_waitcnt vmcnt(0)
        v_cmp_gt_u32 vcc, {target}, v{vpv}
        s_cbranch_vccnz {Ls}
        s_branch {Lo}
        {Lt}:
        s_mov_b32 s{sTO}, 0
        s_branch {Lo}
        """)
    def unpack(dst, src):
        k(f"v_lshlrev_b32 v{dst}, 16, v{src}\nv_and_b32 v{dst+1}, 0xffff0000, v{src}")
    p = RV
    def pv(n=1, al=None):
        nonlocal p
        al = al or (1 if n == 1 else 2 if n < 4 else 4)
        p = (p + al - 1) // al * al; r = p; p += n; assert p <= CX, p; return r
    def kload(a):
        imm = 64 * (62 - 2 * a)
        base = (L_KLO + 1024 * a) if a < 16 else (L_KHI + 1024 * (a - 16))
        k(f"s_add_u32 m0, s{sk16}, {base - imm}")
        k.vmem(f"buffer_load_dwordx4 v{vko}, {W}, s{sko} offen offset:{imm} lds", ("k", a))
    def cloads(XA, ST, h):
        k(f"s_mov_b32 s{st0}, {ST + h*4096}\ns_mov_b32 s{st1}, {ST + h*4096 + 8192}")
        k.vmem(f"buffer_load_dwordx4 {vr(CS1,4)}, v{vcs}, {W}, s{st0} offen {SC}", "cs")
        k.vmem(f"buffer_load_dwordx4 {vr(CS2,4)}, v{vcs}, {W}, s{st1} offen {SC}", "cs")
        k(f"s_mov_b32 s{st0}, {XA + h*32*32768}")
        k.vmem(f"buffer_load_dwordx4 {vr(CX,4)}, v{vcx}, {W}, s{st0} offen {SC}", "cx")

    L0_XT = L_X; L0_PAR = L_X + 8192; L0_TAB = L_X + 12288; TABSZ = 6656
    L0_PART = L0_TAB + 2 * TABSZ; L0_W = L0_PART + 16384
    pU, pLA, pAI, pCR, pCI, pDT, pDS = P, P+2, P+4, P+6, P+8, P+10, P+12
    p = RV
    tm = pv(16); vla, vai, vcr, vci, vcr2, vci2 = range(tm, tm + 6)
    vrow = pv(8); vxt = pv(8); wfr = pv(32)
    pcf = pv(2)
    vo_n, vo_c, vo_x, vo_w, vi, vq, vtrx, vxo, vtrw, vsow, vfs, vdt, vp0 = [pv() for _ in range(13)]
    wa = pv(4); ga = pv(9); zz = pv(4)
    A = pv(4); B = pv(16); acc = pv(16); pr = pv(64)
    par = acc
    k(f"""
    s_cmp_ge_u32 s2, 256
    s_cbranch_scc1 {N}_end
    s_load_dwordx16 s[{P}:{P+15}], s[0:1], 0
    s_load_dwordx8 s[{Q}:{Q+7}], s[0:1], 64
    s_load_dwordx4 s[{rT}:{rT+3}], s[0:1], 96
    """)
    if opt.get("cpf", 1):
        k(f"""
        s_getpc_b64 s[{sStampA}:{sStampA+1}]
        s_lshr_b32 s{st0}, s2, 3
        s_lshl_b32 s{st0}, s{st0}, 12
        v_lshl_add_u32 v{t3}, v0, 4, s{st0}
        v_min_u32 v{t3}, {N}_codeend - {KNAME} - 64, v{t3}
        global_load_dwordx4 {vr(CX,4)}, v{t3}, s[{sStampA}:{sStampA+1}]
        """)
    if diag:
        k(f"v_mov_b32 v{vstamp}, 0\ns_mov_b64 s[{sIdx}:{sIdx+1}], 4\ns_memrealtime s[{sStampB}:{sStampB+1}]\ns_memtime s[{sStampA}:{sStampA+1}]")
        names[0].append("start")
    k(f"""
    v_and_b32 v{lane}, 63, v0
    v_lshrrev_b32 v{t0}, 6, v0
    v_readfirstlane_b32 s{sw}, v{t0}
    v_lshlrev_b32 v{vo16}, 4, v{lane}
    v_lshlrev_b32 v{vt16}, 4, v0
    v_lshlrev_b32 v{vo_n}, 1, v{lane}
    v_lshlrev_b32 v{vo_c}, 2, v{lane}
    v_lshrrev_b32 v{t0}, 3, v{lane}
    v_lshlrev_b32 v{t0}, 10, v{t0}
    v_and_b32 v{t1}, 7, v{lane}
    v_lshl_add_u32 v{vo_x}, v{t1}, 4, v{t0}
    v_and_b32 v{vi}, 15, v{lane}
    v_lshrrev_b32 v{vq}, 4, v{lane}
    s_lshr_b32 s{sc_}, s{sw}, 1
    s_and_b32 s{sp}, s{sw}, 1
    s_lshl_b32 s{sch}, s2, 1
    s_add_u32 s{sch}, s{sch}, s{sc_}
    s_lshl_b32 s{stask}, s2, 2
    s_add_u32 s{stask}, s{stask}, s{sw}
    s_mov_b32 s{rA+2}, 131072
    s_mov_b32 s{rA+3}, 0x20000
    s_mov_b32 s{rB+2}, 131072
    s_mov_b32 s{rB+3}, 0x20000
    s_mov_b32 s{rWS+2}, {WS_SZ}
    s_mov_b32 s{rWS+3}, 0x20000
    s_mov_b32 s{rOUT+2}, 2097152
    s_mov_b32 s{rOUT+3}, 0x20000
    """)
    Lw2, Lwj = lab("w2"), lab("wj")
    sstep = sx
    k(f"""
    s_lshl_b32 s{st3}, s{sw}, 13
    s_add_u32 s{st3}, s{st3}, {L0_W}
    s_mov_b32 s{sW2b}, {BIG}
    s_cmp_ge_u32 s{stask}, 688
    s_cbranch_scc1 {Lw2}
    v_lshrrev_b32 v{t0}, 2, v{lane}
    v_mul_u32_u24 v{t0}, 2752, v{t0}
    v_and_b32 v{t1}, 3, v{lane}
    v_lshl_add_u32 v{vo_w}, v{t1}, 4, v{t0}
    s_and_b32 s{st0}, s{stask}, 7
    s_mul_i32 s{sWsrc}, s{st0}, {64*2752}
    s_lshr_b32 s{st1}, s{stask}, 4
    s_lshl_b32 s{sWdst}, s{st1}, 6
    s_add_u32 s{sWsrc}, s{sWsrc}, s{sWdst}
    s_mov_b32 s{sstep}, {16*2752}
    s_lshl_b32 s{sWdst}, s{st1}, 16
    s_lshl_b32 s{st0}, s{st0}, 12
    s_add_u32 s{sWdst}, s{sWdst}, s{st0}
    s_and_b32 s{st0}, s{stask}, 8
    s_lshl_b32 s{st0}, s{st0}, 5
    s_add_u32 s{sWdst}, s{sWdst}, s{st0}
    s_add_u32 s{sWdst}, s{sWdst}, {W1F}
    s_mov_b32 s{sIsW2}, 0
    s_branch {Lwj}
    {Lw2}:
    s_sub_u32 s{st0}, s{stask}, 688
    v_mov_b32 v{vo_w}, v{vo_x}
    s_lshr_b32 s{st1}, s{st0}, 3
    s_and_b32 s{st0}, s{st0}, 7
    s_lshl_b32 s{sWsrc}, s{st1}, 15
    s_lshl_b32 s{sWdst}, s{st0}, 7
    s_add_u32 s{sWsrc}, s{sWsrc}, s{sWdst}
    s_mov_b32 s{sstep}, 8192
    s_mul_i32 s{sWdst}, s{st0}, {2*86*1024}
    s_lshl_b32 s{st0}, s{st1}, 11
    s_add_u32 s{sWdst}, s{sWdst}, s{st0}
    s_add_u32 s{sWdst}, s{sWdst}, {W2F}
    s_cmp_eq_u32 s{st1}, 0
    s_cselect_b32 s{sW2b}, {42*32768}, s{sW2b}
    s_mov_b32 s{sIsW2}, 1
    {Lwj}:
    s_lshr_b32 s{st0}, s2, 3
    s_lshl_b32 s{st0}, s{st0}, 16
    s_lshl_b32 s{st1}, s{sw}, 14
    s_add_u32 s{st0}, s{st0}, s{st1}
    s_and_b32 s{st1}, s2, 7
    s_lshl_b32 s{st1}, s{st1}, 7
    s_add_u32 s{sw2}, s{st0}, s{st1}
    s_lshl_b32 s{st1}, s{sw}, 11
    s_add_u32 m0, s{st1}, {L0_XT}
    s_lshl_b32 s{st0}, s{sch}, 8
    s_lshl_b32 s{st1}, s{sp}, 7
    s_add_u32 s{st1}, s{st1}, s{st0}
    s_lshl_b32 s{st2}, s2, 2
    s_waitcnt lgkmcnt(0)
    """)
    if diag:
        k(f"v_writelane_b32 v{vstamp}, s{sStampB}, 0\nv_writelane_b32 v{vstamp}, s{sStampA}, 1")
        stamp("karg")
    k(f"""
    s_load_dword s{sdt}, s[{pDT}:{pDT+1}], s{st2}
    s_load_dword s{sDs}, s[{pDS}:{pDS+1}], s{st2}
    s_mov_b32 s{rA}, s{pLA}
    s_mov_b32 s{rA+1}, s{pLA+1}
    s_mov_b32 s{rB}, s{pCR}
    s_mov_b32 s{rB+1}, s{pCR+1}
    buffer_load_ushort v{vla}, v{vo_n}, s[{rA}:{rA+3}], s{st1} offen
    buffer_load_dword v{vcr2}, v{vo_c}, s[{rB}:{rB+3}], s{st0} offen
    buffer_load_ushort v{vcr}, v{vo_n}, s[{rB}:{rB+3}], s{st1} offen
    s_mov_b32 s{rA}, s{pAI}
    s_mov_b32 s{rA+1}, s{pAI+1}
    s_mov_b32 s{rB}, s{pCI}
    s_mov_b32 s{rB+1}, s{pCI+1}
    buffer_load_ushort v{vai}, v{vo_n}, s[{rA}:{rA+3}], s{st1} offen
    buffer_load_dword v{vci2}, v{vo_c}, s[{rB}:{rB+3}], s{st0} offen
    buffer_load_ushort v{vci}, v{vo_n}, s[{rB}:{rB+3}], s{st1} offen
    s_mov_b32 s{rOUT}, s{pU}
    s_mov_b32 s{rOUT+1}, s{pU+1}
    buffer_load_dwordx4 v{vo_x}, s[{rOUT}:{rOUT+3}], s{sw2} offen lds
    s_add_u32 m0, m0, 1024
    s_add_u32 s{sw2}, s{sw2}, 8192
    buffer_load_dwordx4 v{vo_x}, s[{rOUT}:{rOUT+3}], s{sw2} offen lds
    s_lshl_b32 s{st0}, s{stask}, 11
    buffer_load_dwordx4 {vr(vrow,4)}, v{vo16}, s[{rOUT}:{rOUT+3}], s{st0} offen
    buffer_load_dwordx4 {vr(vrow+4,4)}, v{vo16}, s[{rOUT}:{rOUT+3}], s{st0} offen offset:1024
    s_bitcmp1_b32 s{stask}, 3
    s_cselect_b32 s{rA}, s{Q+2}, s{Q}
    s_cselect_b32 s{rA+1}, s{Q+3}, s{Q+1}
    s_cmp_eq_u32 s{sIsW2}, 1
    s_cselect_b32 s{rA}, s{Q+4}, s{rA}
    s_cselect_b32 s{rA+1}, s{Q+5}, s{rA+1}
    s_mov_b32 s{rA+2}, {512*2752}
    s_mov_b32 m0, s{st3}
    s_mov_b32 s{st0}, s{sWsrc}
    """)
    for i in range(4):
        k(f"buffer_load_dwordx4 v{vo_w}, s[{rA}:{rA+3}], s{st0} offen lds")
        k(f"s_add_u32 m0, m0, 1024\ns_add_u32 s{st0}, s{st0}, s{sstep}")
    k(f"s_add_u32 s{st0}, s{sWsrc}, s{sW2b}")
    for i in range(4):
        k(f"buffer_load_dwordx4 v{vo_w}, s[{rA}:{rA+3}], s{st0} offen lds")
        if i < 3: k(f"s_add_u32 m0, m0, 1024\ns_add_u32 s{st0}, s{st0}, s{sstep}")
    k(f"""
    s_mov_b32 s{rWS}, s{rT+2}
    s_mov_b32 s{rWS+1}, s{rT+3}
    s_mov_b32 s{rT+2}, 256
    s_mov_b32 s{rT+3}, 0x20000
    s_mov_b32 s{rOUT}, s{Q+6}
    s_mov_b32 s{rOUT+1}, s{Q+7}
    v_mov_b32 v{zz}, 0
    v_mov_b32 v{zz+1}, 0
    v_mov_b32 v{zz+2}, 0
    v_mov_b32 v{zz+3}, 0
    s_lshl_b32 s{st0}, s{stask}, 7
    s_add_u32 s{st0}, s{st0}, {CNT}
    s_mov_b64 exec, 0xff
    buffer_store_dwordx4 {vr(zz,4)}, v{vo16}, {W}, s{st0} offen {SC}
    s_mov_b64 exec, -1
    s_mul_i32 s{sko}, s{sch}, {KR_CH}
    s_add_u32 s{sko}, s{sko}, {KR}
    v_lshrrev_b32 v{t0}, 1, v{lane}
    v_mul_u32_u24 v{t0}, {KR_CP}, v{t0}
    v_and_b32 v{t1}, 1, v{lane}
    v_lshlrev_b32 v{vp0}, 7, v{t1}
    v_lshl_add_u32 v{t0}, v{t1}, 4, v{t0}
    v_add_u32 v{t0}, 4096, v{t0}
    s_mov_b64 exec, 15
    buffer_store_dwordx4 {vr(zz,4)}, v{t0}, {W}, s{sko} offen
    s_mov_b64 exec, -1
    v_lshrrev_b32 v{t0}, 5, v{lane}
    v_mul_u32_u24 v{t0}, {UB - 512}, v{t0}
    v_add_u32 v{t0}, v{vo16}, v{t0}
    ds_write_b128 v{t0}, {vr(zz,4)}
    v_lshlrev_b32 v{varr}, 10, v0
    v_mov_b32 v{t1}, {BIG}
    v_cmp_gt_u32 vcc, 8, v0
    v_and_b32 v{vpol}, 7, v0
    v_lshlrev_b32 v{vpol}, 7, v{vpol}
    v_cndmask_b32 v{varr}, v{t1}, v{varr}, vcc
    v_cmp_eq_u32 vcc, 0, v0
    v_add_u32 v{vw2b}, {86*1024}, v{vo16}
    v_mov_b32 v{vone}, 1
    v_cndmask_b32 v{varr1}, v{t1}, v0, vcc
    s_mov_b32 s{sTO}, 400000
    s_lshl_b32 s{sk16}, s{sw}, 14
    s_mov_b32 s{sone}, 0x3f803f80
    s_mov_b32 s{sinv}, {f32(1/512)}
    s_mov_b32 s{sinv+1}, {f32(1/512)}
    s_mov_b32 s{seps}, {f32(1e-5)}
    s_mov_b32 s{seps+1}, {f32(1e-5)}
    """)
    def Pfun(dst, src, ta, tb):
        k(f"""
        v_subrev_u32 v{ta}, 7, v{src}
        v_lshlrev_b32 v{ta}, 7, v{ta}
        v_subrev_u32 v{tb}, 10, v{src}
        v_lshlrev_b32 v{tb}, 9, v{tb}
        v_cmp_eq_u32 vcc, 15, v{src}
        v_max3_i32 v{dst}, v{src}, v{ta}, v{tb}
        v_mov_b32 v{ta}, 516
        v_cndmask_b32 v{dst}, v{dst}, v{ta}, vcc
        """)
    Pfun(pcf, vi, t0, t1)
    k(f"""
    v_cvt_f32_u32 v{pcf}, v{pcf}
    v_lshlrev_b32 v{pcf+1}, 3, v{vi}
    v_cvt_f32_u32 v{pcf+1}, v{pcf+1}
    v_lshrrev_b32 v{t0}, 2, v{vi}
    v_lshl_add_u32 v{t0}, v{vq}, 3, v{t0}
    v_lshlrev_b32 v{t0}, 7, v{t0}
    v_and_b32 v{t1}, 3, v{vi}
    v_lshl_add_u32 v{vtrx}, v{t1}, 3, v{t0}
    s_lshl_b32 s{st0}, s{sw}, 5
    s_add_u32 s{st0}, s{st0}, {L0_XT}
    v_add_u32 v{vtrx}, s{st0}, v{vtrx}
    v_lshlrev_b32 v{vxo}, 6, v{vi}
    v_lshl_add_u32 v{vxo}, v{vq}, 4, v{vxo}
    """)
    k(f"""
    v_lshrrev_b32 v{t0}, 5, v{lane}            ; hl
    v_bfe_u32 v{t1}, v{lane}, 2, 2             ; r
    v_lshl_add_u32 v{t1}, v{t0}, 3, v{t1}      ; 8hl + r
    s_add_u32 s{st0}, s{sIsW2}, 6
    v_lshlrev_b32 v{vtrw}, s{st0}, v{t1}       ; *64 or *128
    v_bfe_u32 v{t1}, v{lane}, 4, 1
    v_lshl_add_u32 v{vtrw}, v{t1}, 5, v{vtrw}
    v_lshlrev_b32 v{vsow}, 15, v{t1}
    v_lshl_add_u32 v{vsow}, v{t0}, 9, v{vsow}
    v_lshl_add_u32 v{vsow}, v{vi}, 4, v{vsow}
    v_and_b32 v{t1}, 1, v{lane}
    v_bfe_u32 v{t2}, v{lane}, 1, 1
    s_sub_u32 s{st0}, 4, s{sIsW2}
    v_lshlrev_b32 v{t1}, s{st0}, v{t1}
    s_add_u32 s{st0}, s{sIsW2}, 3
    v_lshlrev_b32 v{t2}, s{st0}, v{t2}
    v_add3_u32 v{vtrw}, v{vtrw}, v{t1}, v{t2}
    v_add_u32 v{vtrw}, s{st3}, v{vtrw}
    """)
    k(f"""
    s_mul_i32 s{st0}, s{sp}, 640
    s_mul_i32 s{st1}, s{sc_}, {TABSZ}
    s_add_u32 s{st0}, s{st0}, s{st1}
    s_add_u32 s{st0}, s{st0}, {L0_TAB}
    v_mul_u32_u24 v{t3}, 20, v{vi}
    v_add_u32 v{t3}, s{st0}, v{t3}
    """)
    for r in range(4):
        k(f"v_lshl_add_u32 v{t2}, v{vq}, 2, {r}")
        Pfun(wa + r, t2, t0, t1)
        k(f"""
        v_lshrrev_b32 v{t0}, 3, v{wa+r}
        v_lshl_add_u32 v{wa+r}, v{wa+r}, 1, v{t3}
        v_lshl_add_u32 v{wa+r}, v{t0}, 2, v{wa+r}
        """)
    k(f"""
    v_lshlrev_b32 v{t0}, 3, v0
    v_sub_u32 v{t0}, 2047, v{t0}
    v_cvt_f32_u32 v{t0}, v{t0}
    """)
    for e in range(0, 10, 2):
        k(f"""
        v_add_f32 v{t1}, {f32(-float(e))}, v{t0}
        v_add_f32 v{t2}, {f32(-float(e+1))}, v{t0}
        v_max_f32 v{t1}, 0, v{t1}
        v_cvt_pk_bf16_f32 v{t1}, v{t1}, v{t2}
        v_and_b32 v{t2}, 0xffff0000, v{t1}
        v_lshlrev_b32 v{t1}, 16, v{t1}
        """)
        for ee, tt in ((e, t1), (e + 1, t2)):
            if ee > 8: continue
            k(f"""
            v_cvt_u32_f32 v{tt}, v{tt}
            v_lshrrev_b32 v{t3}, 3, v{tt}
            v_lshlrev_b32 v{ga+ee}, 1, v{tt}
            v_lshl_add_u32 v{ga+ee}, v{t3}, 2, v{ga+ee}
            """)
    stamp("consts")
    k("s_waitcnt vmcnt(14) lgkmcnt(0)")
    stamp("params_in")
    k(f"""
    s_lshl_b32 s{st1}, s{sc_}, 4
    s_lshr_b32 s{sdt}, s{sdt}, s{st1}
    s_lshl_b32 s{sdt}, s{sdt}, 16
    v_mov_b32 v{t0}, {f32(LOG2E)}
    v_mul_f32 v{vdt}, s{sdt}, v{t0}
    v_lshlrev_b32 v{vla}, 16, v{vla}
    v_mul_f32 v{vla}, v{vla}, v{t0}
    v_exp_f32 v{vdt}, v{vdt}
    v_exp_f32 v{vla}, v{vla}
    v_and_b32 v{vcr2}, 0x7fff7fff, v{vcr2}
    v_and_b32 v{vci2}, 0x7fff7fff, v{vci2}
    v_pk_max_u16 v{vcr2}, v{vcr2}, v{vci2}
    v_cvt_pk_bf16_f32 v{vdt}, v{vdt}, v{vla}
    v_lshrrev_b32 v{vci2}, 16, v{vcr2}
    v_and_b32 v{vcr2}, 0xffff, v{vcr2}
    v_max_u32 v{vcr2}, v{vcr2}, v{vci2}
    v_and_b32 v{vla}, 0xffff0000, v{vdt}
    v_lshlrev_b32 v{vdt}, 16, v{vdt}
    v_max_u32_dpp v{vcr2}, v{vcr2}, v{vcr2} row_ror:8 row_mask:0xf bank_mask:0xf
    v_mul_f32 v{vla}, v{vla}, v{vdt}
    v_lshlrev_b32 v{vai}, 16, v{vai}
    v_max_u32_dpp v{vcr2}, v{vcr2}, v{vcr2} row_ror:4 row_mask:0xf bank_mask:0xf
    v_mul_f32 v{par}, {f32(-LOG2E)}, v{vla}
    v_mul_f32 v{vai}, v{vai}, v{vdt}
    v_max_u32_dpp v{vcr2}, v{vcr2}, v{vcr2} row_ror:2 row_mask:0xf bank_mask:0xf
    v_mul_f32 v{vai}, {f32(1/(2*math.pi))}, v{vai}
    v_lshlrev_b32 v{vcr}, 16, v{vcr}
    v_max_u32_dpp v{vcr2}, v{vcr2}, v{vcr2} row_ror:1 row_mask:0xf bank_mask:0xf
    v_lshlrev_b32 v{vci}, 16, v{vci}
    v_rndne_f32 v{t0}, v{vai}
    v_readlane_b32 s{st0}, v{vcr2}, 0
    v_readlane_b32 s{st1}, v{vcr2}, 16
    v_readlane_b32 s{st2}, v{vcr2}, 32
    v_readlane_b32 s{st3}, v{vcr2}, 48
    v_sub_f32 v{par+1}, v{vai}, v{t0}
    s_max_u32 s{st0}, s{st0}, s{st1}
    s_max_u32 s{st2}, s{st2}, s{st3}
    s_max_u32 s{st0}, s{st0}, s{st2}
    s_lshr_b32 s{st0}, s{st0}, 7
    s_max_u32 s{st0}, s{st0}, 1
    s_min_u32 s{st0}, s{st0}, 253
    s_lshl_b32 s{ssu}, s{st0}, 23
    s_sub_u32 s{ssd}, 254, s{st0}
    s_lshl_b32 s{ssd}, s{ssd}, 23
    v_mul_f32 v{par+2}, s{ssd}, v{vcr}
    v_mul_f32 v{par+3}, s{ssd}, v{vci}
    v_add_f32 v{vfs}, v{vdt}, v{vdt}
    v_mul_f32 v{vfs}, s{ssu}, v{vfs}
    ds_write_b128 v{vt16}, {vr(par,4)} offset:{L0_PAR}
    s_lshl_b32 s{st0}, s{sw}, 10
    v_lshl_add_u32 v{t1}, v{vq}, 6, s{st0}
    s_lshr_b32 s{st0}, s2, 3
    s_lshl_b32 s{st0}, s{st0}, 16
    s_and_b32 s{st1}, s2, 7
    s_lshl_b32 s{st1}, s{st1}, 12
    s_add_u32 s{st0}, s{st0}, s{st1}
    s_lshl_b32 s{st1}, s{sw}, 10
    s_add_u32 s{st0}, s{st0}, s{st1}
    s_add_u32 s{st1}, s{st0}, 32768
    s_waitcnt lgkmcnt(0)
    """)
    for s in range(4):
        for e in range(4):
            b = pr + (s * 4 + e) * 4
            k(f"ds_read_b128 {vr(b,4)}, v{t1} offset:{L0_PAR + s*256 + e*16}")
    stamp("params")
    k("s_waitcnt vmcnt(2)\ns_barrier")
    stamp("xw_in")
    for lb in range(2):
        for c in range(2):
            k(f"ds_read_b64_tr_b16 {vr(vxt+4*lb+2*c,2)}, v{vtrx} offset:{lb*4096+c*512}")
    Lw2, Lwj = lab("w2"), lab("wj")
    k(f"s_cmp_eq_u32 s{sIsW2}, 1\ns_cbranch_scc1 {Lw2}")
    for i in range(4):
        for c in range(2):
            k(f"ds_read_b64_tr_b16 {vr(wfr+i*4+2*c,2)}, v{vtrw} offset:{i*1024+c*256}")
    k("s_waitcnt lgkmcnt(0)")
    for i in range(4):
        k(f"buffer_store_dwordx4 {vr(wfr+i*4,4)}, v{vsow}, {W}, s{sWdst} offen offset:{i*1024} {SC}")
    k(f"s_branch {Lwj}\n{Lw2}:")
    for tsk in range(2):
        for dtl in range(2):
            for un in range(2):
                i = tsk * 4 + dtl * 2 + un
                for c in range(2):
                    k(f"ds_read_b64_tr_b16 {vr(wfr+i*4+2*c,2)}, v{vtrw} offset:{tsk*4096+un*2048+c*512+dtl*64}")
    k("s_waitcnt lgkmcnt(0)")
    for dtl in range(2):
        for un in range(2):
            k(f"buffer_store_dwordx4 {vr(wfr+(dtl*2+un)*4,4)}, v{vw2b if dtl else vo16}, {W}, s{sWdst} offen offset:{un*1024} {SC}")
    k(f"s_cmp_eq_u32 s{sW2b}, {BIG}\ns_cbranch_scc1 {Lwj}")
    k(f"s_add_u32 s{sWdst}, s{sWdst}, {42*2048}")
    for dtl in range(2):
        for un in range(2):
            k(f"buffer_store_dwordx4 {vr(wfr+16+(dtl*2+un)*4,4)}, v{vw2b if dtl else vo16}, {W}, s{sWdst} offen offset:{un*1024} {SC}")
    k(f"{Lwj}:")
    k(f"""
    buffer_store_dwordx4 {vr(vxt,4)}, v{vxo}, {W}, s{st0} offen {SC}
    buffer_store_dwordx4 {vr(vxt+4,4)}, v{vxo}, {W}, s{st1} offen {SC}
    """)
    ss = B
    for j in range(4): k(f"v_mov_b32 v{ss+j}, 0")
    for j in range(4):
        for r in range(2):
            k(f"v_dot2c_f32_bf16 v{ss+r}, s{sone}, v{vrow+4*r+j}")
            k(f"v_dot2c_f32_bf16 v{ss+2+r}, v{vrow+4*r+j}, v{vrow+4*r+j}")
    k(f"""
    v_permlane32_swap_b32 v{ss}, v{ss+2}
    v_permlane32_swap_b32 v{ss+1}, v{ss+3}
    v_add_f32 v{ss}, v{ss}, v{ss+2}
    v_add_f32 v{ss+1}, v{ss+1}, v{ss+3}
    v_permlane16_swap_b32 v{ss}, v{ss+1}
    v_add_f32 v{ss}, v{ss}, v{ss+1}
    v_add_f32_dpp v{ss}, v{ss}, v{ss} row_ror:8 row_mask:0xf bank_mask:0xf
    v_and_b32 v{t0}, 1, v{vq}
    v_lshlrev_b32 v{t0}, 2, v{t0}
    v_add_f32_dpp v{ss}, v{ss}, v{ss} row_ror:4 row_mask:0xf bank_mask:0xf
    v_lshrrev_b32 v{t2}, 1, v{vq}
    v_lshl_add_u32 v{t0}, v{t2}, 13, v{t0}
    v_add_f32_dpp v{ss}, v{ss}, v{ss} row_ror:2 row_mask:0xf bank_mask:0xf
    s_lshl_b32 s{st2}, s{stask}, 3
    s_add_u32 s{st2}, s{st2}, {ST0}
    v_add_f32_dpp v{ss}, v{ss}, v{ss} row_ror:1 row_mask:0xf bank_mask:0xf
    s_mov_b32 exec_lo, 0x00010001
    s_mov_b32 exec_hi, 0x00010001
    buffer_store_dword v{ss}, v{t0}, {W}, s{st2} offen {SC}
    s_mov_b64 exec, -1
    """)
    stamp("xw_out")
    DB = f"s[{rT}:{rT+3}]"
    for s in range(4):
        for e in range(4):
            b = pr + (s * 4 + e) * 4
            xx, pp_, cs1, cs2 = tm, tm + 2, tm + 4, tm + 6
            m1, m2, m3, u1, u2, u3 = range(tm + 8, tm + 14)
            Ad = A + e
            Bd = [B + nt * 4 + e for nt in range(4)]
            k(f"""
            v_pk_mul_f32 {vr(pp_,2)}, {vr(b,2)}, {vr(pcf,2)} op_sel:[1,0] op_sel_hi:[1,1]
            v_pk_mul_f32 {vr(xx,2)}, {vr(b,2)}, {vr(pcf,2)} op_sel:[0,0] op_sel_hi:[0,1]
            v_fract_f32 v{pp_}, v{pp_}
            v_cos_f32 v{cs2}, v{pp_+1}
            v_sin_f32 v{cs2+1}, v{pp_+1}
            v_exp_f32 v{xx+1}, v{xx+1}
            v_exp_f32 v{xx}, v{xx}
            v_cos_f32 v{cs1}, v{pp_}
            v_sin_f32 v{cs1+1}, v{pp_}
            v_nop
            v_pk_mul_f32 {vr(cs2,2)}, {vr(cs2,2)}, {vr(xx,2)} op_sel:[0,1] op_sel_hi:[1,1]
            v_pk_mul_f32 {vr(cs1,2)}, {vr(cs1,2)}, {vr(xx,2)} op_sel:[0,0] op_sel_hi:[1,0]
            v_pk_mul_f32 {vr(pp_,2)}, {vr(cs2,2)}, {vr(b+2,2)} op_sel:[0,0] op_sel_hi:[1,0]
            v_cvt_pk_f16_f32 v{Ad}, v{cs1}, -v{cs1+1}
            v_pk_fma_f32 {vr(pp_,2)}, {vr(cs2,2)}, {vr(b+2,2)}, {vr(pp_,2)} op_sel:[1,1,0] op_sel_hi:[0,1,1] neg_lo:[1,0,0]
            v_cvt_pk_f16_f32 v{Bd[0]}, v{pp_}, v{pp_+1}
            v_mov_b32_dpp v{m1}, v{Ad} row_newbcast:8 row_mask:0xf bank_mask:0xf
            v_mov_b32_dpp v{m2}, v{Ad} row_newbcast:9 row_mask:0xf bank_mask:0xf
            v_mov_b32_dpp v{m3}, v{Ad} row_newbcast:10 row_mask:0xf bank_mask:0xf
            v_pk_mul_f16 v{u1}, v{Bd[0]}, v{m1} op_sel:[0,0] op_sel_hi:[1,0]
            v_pk_mul_f16 v{u2}, v{Bd[0]}, v{m2} op_sel:[0,0] op_sel_hi:[1,0]
            v_pk_mul_f16 v{u3}, v{Bd[0]}, v{m3} op_sel:[0,0] op_sel_hi:[1,0]
            v_pk_fma_f16 v{Bd[1]}, v{Bd[0]}, v{m1}, v{u1} op_sel:[1,1,0] op_sel_hi:[0,1,1] neg_hi:[1,0,0]
            v_pk_fma_f16 v{Bd[2]}, v{Bd[0]}, v{m2}, v{u2} op_sel:[1,1,0] op_sel_hi:[0,1,1] neg_hi:[1,0,0]
            v_pk_fma_f16 v{Bd[3]}, v{Bd[0]}, v{m3}, v{u3} op_sel:[1,1,0] op_sel_hi:[0,1,1] neg_hi:[1,0,0]
            """.replace("            v_nop\n", ""))
        for nt in range(4):
            c = "0" if s == 0 else vr(acc + nt * 4, 4)
            k(f"v_mfma_f32_16x16x32_f16 {vr(acc+nt*4,4)}, {vr(A,4)}, {vr(B+nt*4,4)}, {c}")
        if s == 1:
            stamp("kgen01")
            k("s_waitcnt vmcnt(0)\ns_barrier")
            k(f"s_and_b32 s{st0}, s2, 1\ns_lshl_b32 s{st0}, s{st0}, 7")
            k.vm = []
            arrive(f"s{st0}", True, srd=DB)
            stamp("arrS0")
    stamp("kgen23")
    k(f"""
    s_lshl_b32 s{st0}, s{sw}, 12
    v_add_u32 v{t0}, s{st0}, v{vo16}
    s_lshl_b32 s{st0}, s{sc_}, 13
    s_lshl_b32 s{st1}, s{sp}, 11
    s_add_u32 s{st0}, s{st0}, s{st1}
    v_add_u32 v{t1}, s{st0}, v{vo16}
    """)
    for nt in range(4):
        k(f"ds_write_b128 v{t0}, {vr(acc+nt*4,4)} offset:{L0_PART+nt*1024}")
    k(f"""
    v_lshrrev_b32 v{t0}, 3, v0                 ; blk
    v_and_b32 v{t2}, 7, v0
    v_lshlrev_b32 v{vcx}, 15, v{t0}
    v_lshl_add_u32 v{vcx}, v{t2}, 4, v{vcx}
    s_lshl_b32 s{st0}, s2, 7
    v_add_u32 v{vcx}, s{st0}, v{vcx}
    v_and_b32 v{t2}, 3, v0                     ; l8
    v_lshl_add_u32 v{t0}, v{t0}, 2, v{t2}      ; j = 4blk + l8
    v_bfe_u32 v{t2}, v0, 2, 1                  ; c
    v_lshlrev_b32 v{vcs}, 5, v{t0}
    v_lshl_add_u32 v{vcs}, v{t2}, 4, v{vcs}
    s_waitcnt lgkmcnt(0)
    s_barrier
    """)
    for j in range(2):
        for pp in range(2):
            k(f"ds_read_b128 {vr(B+j*8+pp*4,4)}, v{t1} offset:{L0_PART+pp*4096+j*1024}")
    k(f"""
    v_mul_u32_u24 v{vcu}, {UB}, v{t2}
    v_lshl_add_u32 v{vcu}, v{t0}, 4, v{vcu}
    v_mul_u32_u24 v{t3}, 171, v{t0}
    v_lshrrev_b32 v{t3}, 11, v{t3}
    v_mul_u32_u24 v{t3}, {98304-192}, v{t3}
    v_lshl_add_u32 v{vcout}, v{t0}, 4, v{t3}
    v_mul_u32_u24 v{t3}, 192, v{t2}
    s_mul_i32 s{st0}, s2, 384
    v_add3_u32 v{vcout}, v{vcout}, v{t3}, s{st0}
    v_mul_u32_u24 v{vpr}, {2*PW}, v{t2}
    v_lshrrev_b32 v{t3}, 5, v{t0}
    v_mul_u32_u24 v{t3}, 1152, v{t3}
    v_add_u32 v{vpr}, v{vpr}, v{t3}
    v_and_b32 v{t3}, 1, v{t0}
    v_mul_u32_u24 v{t3}, 640, v{t3}
    v_add_u32 v{vpr}, v{vpr}, v{t3}
    v_bfe_u32 v{t3}, v{t0}, 1, 4
    v_lshl_add_u32 v{vpr}, v{t3}, 4, v{vpr}
    s_waitcnt lgkmcnt(0)
    """)
    for j in range(2):
        for r in range(0, 4, 2): k(f"v_pk_add_f32 {vr(B+j*8+r,2)}, {vr(B+j*8+r,2)}, {vr(B+j*8+4+r,2)}")
    for j in range(2):
        for r in range(4): k(f"v_mul_f32 v{B+j*8+r}, v{B+j*8+r}, v{vfs}")
    for j in range(2):
        b = B + j * 8
        k(f"v_cvt_pk_bf16_f32 v{b}, v{b}, v{b+1}\nv_cvt_pk_bf16_f32 v{b+2}, v{b+2}, v{b+3}")
    for j in range(2):
        k(f"ds_write_b16_d16_hi v{wa+3}, v{B+j*8+2} offset:{320*j}")
    k("s_mov_b32 exec_hi, 0xffff0000")
    for j in range(2):
        b = B + j * 8
        k(f"ds_write_b16 v{wa}, v{b} offset:{320*j}\nds_write_b16_d16_hi v{wa+1}, v{b} offset:{320*j}\nds_write_b16 v{wa+2}, v{b+2} offset:{320*j}")
    k("s_mov_b32 exec_hi, -1")
    poll_issue("0", srd=DB, va=vp0)
    k("s_waitcnt lgkmcnt(0)\ns_barrier")
    G = pr
    for c in range(2):
        for e in range(9): k(f"ds_read_u16 v{G+c*16+e}, v{ga+e} offset:{L0_TAB+c*TABSZ}")
    k(f"""
    v_cmp_eq_u32 vcc, 255, v0
    s_mul_i32 s{st0}, s2, {2*KR_CH}
    s_add_u32 s{st0}, s{st0}, {KR}
    v_and_b32 v{t0}, 14, v{lane}
    v_lshl_add_u32 v{t0}, v{vq}, 3, v{t0}
    v_sub_u32 v{t0}, 38, v{t0}
    v_and_b32 v{t2}, 1, v{lane}
    v_xor_b32 v{t2}, 1, v{t2}
    v_mul_u32_u24 v{t2}, {KR_CP}, v{t2}
    v_lshl_add_u32 v{vko}, v{t0}, 1, v{t2}
    s_lshl_b32 s{st1}, s{sp}, 6
    s_sub_u32 s{sko}, s{sko}, s{st1}
    s_add_u32 s{sko}, s{sko}, 64
    """)
    for c in range(2):
        g = G + c * 16; O = G + 32 + c * 8; E = O + 4
        k(f"s_waitcnt lgkmcnt({9 if c == 0 else 0})")
        k(f"v_cndmask_b32 v{g+8}, v{g+8}, v{zz}, vcc")
        for j in range(4): k(f"v_lshl_or_b32 v{O+j}, v{g+2*j+1}, 16, v{g+2*j}")
        k.vmem(f"buffer_store_dwordx4 {vr(O,4)}, v{vt16}, {W}, s{st0} offen", "kst")
        for j in range(4): k(f"v_lshl_or_b32 v{E+j}, v{g+2*j+2}, 16, v{g+2*j+1}")
        k(f"s_add_u32 s{st0}, s{st0}, {KR_CP}")
        k.vmem(f"buffer_store_dwordx4 {vr(E,4)}, v{vt16}, {W}, s{st0} offen", "kst")
        if c == 0: k(f"s_add_u32 s{st0}, s{st0}, {KR_CP}")
    stamp("kst")
    k(f"""
    v_lshlrev_b32 v{t0}, 5, v{vi}
    v_lshlrev_b32 v{t2}, 4, v{vq}
    v_sub_u32 v{vbo}, v{t0}, v{t2}
    s_mul_i32 s{st0}, s{sc_}, {UB}
    s_add_u32 s{st0}, s{st0}, 144
    s_sub_u32 s{st0}, s{st0}, s{st1}
    v_add_u32 v{vbo}, s{st0}, v{vbo}
    """)
    poll_check("0", 128, srd=DB, va=vp0)
    cloads(XA0, ST0, 0)
    stamp("S0ok")
    k(f"""
    s_lshl_b32 s{st0}, s{sDs}, 16
    s_and_b32 s{st1}, s{sDs}, 0xffff0000
    v_and_b32 v{t1}, 4, v0
    v_cmp_ne_u32 vcc, 0, v{t1}
    v_mov_b32 v{vD}, s{st0}
    v_mov_b32 v{t1}, s{st1}
    v_cndmask_b32 v{vD}, v{vD}, v{t1}, vcc
    s_mul_i32 s{st0}, s{sw}, {PW}
    s_add_u32 s{st0}, s{st0}, {L_P}
    v_lshrrev_b32 v{t0}, 5, v{lane}
    v_lshlrev_b32 v{t2}, 7, v{t0}
    v_add3_u32 v{vpw}, s{st0}, v{t2}, v{vo16}
    v_lshlrev_b32 v{t2}, 3, v{t0}
    v_bfe_u32 v{t1}, v{lane}, 2, 2
    v_add_u32 v{t2}, v{t2}, v{t1}
    v_mul_u32_u24 v{t2}, 192, v{t2}
    v_bfe_u32 v{t1}, v{lane}, 4, 1
    v_lshl_add_u32 v{t2}, v{t1}, 5, v{t2}
    v_and_b32 v{t1}, 3, v{lane}
    v_lshl_add_u32 v{t2}, v{t1}, 3, v{t2}
    """)
    k.wait_vm("kst")
    k("s_barrier")
    for a in range(16): kload(a)
    for j in range(4):
        k(f"""
        s_add_u32 s{st0}, s{sw}, {j}
        s_and_b32 s{st0}, s{st0}, 3
        s_mul_i32 s{st0}, s{st0}, 3072
        s_add_u32 s{st0}, s{st0}, 32768
        v_add_u32 v{vtr+j}, s{st0}, v{t2}
        """)
    k(f"""
    v_add_u32 v{vst}, {L_ST}, v{vo16}
    s_and_b32 s{st0}, s2, 7
    s_lshr_b32 s{st1}, s2, 3
    s_and_b32 s{st2}, s{st0}, 3
    s_mul_i32 s{st2}, s{st2}, 31
    s_add_u32 s{st2}, s{st2}, s{st1}
    s_cmp_lt_u32 s{st2}, 121
    s_cselect_b32 s{sG1}, 1, 0
    s_cmp_lt_u32 s{st1}, 31
    s_cselect_b32 s{sG1}, s{sG1}, 0
    s_mul_i32 s{srb}, s{st2}, 373
    s_lshr_b32 s{srb}, s{srb}, 12
    s_mul_i32 s{st3}, s{srb}, 11
    s_sub_u32 s{su}, s{st2}, s{st3}
    s_lshr_b32 s{st3}, s{st0}, 2
    s_mul_i32 s{st3}, s{st3}, 11
    s_add_u32 s{su}, s{su}, s{st3}
    s_lshl_b32 s{su}, s{su}, 2
    s_add_u32 s{su}, s{su}, s{sw}
    s_lshl_b32 s{sa}, s{st0}, 2
    s_and_b32 s{st3}, s{st1}, 3
    s_add_u32 s{sa}, s{sa}, s{st3}
    s_lshr_b32 s{sb}, s{st1}, 2
    s_lshl_b32 s{sArr}, s{st0}, 7
    s_lshl_b32 s{sPol}, s{st0}, 10
    s_mul_i32 s{sw3}, s{sw}, 3072
    s_mov_b32 s{sLayer}, 0
    s_mov_b32 s{sXB}, {XB1}
    s_mov_b32 s{sH}, {H1}
    s_mov_b32 s{sCnt}, {CNT}
    s_mov_b32 s{sGc}, {CNT_G}
    """)
    stamp("P0end")

    gacc = POOL; XF = POOL + 48; SS = POOL + 84; SQ = POOL + 88
    atmp = XF; acst = XF + 8; MB = XF + 20
    slot = [[32768 + 12288 * i for i in range(8)], [0, 12288, 135168, 147456] + [32768 + 12288 * i for i in range(4)]]
    dbase = [[32768] * 4 + [81920] * 4, [0, 0, 135168, 135168] + [32768] * 4]
    xq = []
    def x_setup(h, XB):
        k(f"s_mul_i32 s{sx}, s{srb}, 98304\ns_add_u32 s{sx}, s{sx}, s{sw3}\ns_add_u32 s{sx}, s{sx}, {XB + h*XB_H}")
        xq.extend((h, i, j) for i in range(8) for j in range(3))
    def xdma():
        h, i, j = xq.pop(0)
        if j == 0: k(f"s_add_u32 m0, s{sw3}, {slot[h][i]}")
        k.vmem(f"buffer_load_dwordx4 v{vo16}, {W}, s{sx} offen offset:{j*1024} {SC} lds", ("x", h, i))
        if j == 2 and i < 7: k(f"s_add_u32 s{sx}, s{sx}, 12288")
    NXPRE = opt.get("nxpre", 15)
    bacc = POOL; BT = POOL + 32; RES = POOL + 48
    def hreg(s): return vr(252 - 4 * s, 4)
    NHA = 20
    def h_setup(h, H):
        k(f"""
        s_mul_i32 s{shl}, s{sa}, {86*1024}
        s_lshl_b32 s{st2}, s{sw}, 10
        s_add_u32 s{shl}, s{shl}, s{st2}
        s_add_u32 s{shl}, s{shl}, {H + h*32*86*1024}
        """)
    def hload(h, s):
        if s == 21: k(f"s_cmp_ge_u32 s{sw}, 2\ns_cselect_b32 s{shl}, {BIG}, s{shl}")
        k.vmem(f"buffer_load_dwordx4 {hreg(s)}, v{vo16}, {W}, s{shl} offen {SC}", ("h", h, s))
        if s < 21: k(f"s_add_u32 s{shl}, s{shl}, 4096")
    def w2_setup():
        k(f"""
        s_mul_i32 s{sw2}, s{sb}, {2*86*1024}
        s_lshl_b32 s{st0}, s{sw}, 10
        s_add_u32 s{sw2}, s{sw2}, s{st0}
        s_add_u32 s{sw2}, s{sw2}, {W2F}
        """)
    def w2load(i):
        s, dt = i // 2, i % 2
        if s == 21 and dt == 0: k(f"s_cmp_ge_u32 s{sw}, 2\ns_cselect_b32 s{sw2}, {BIG}, s{sw2}")
        k.vmem(f"buffer_load_dwordx4 {Rreg(i)}, v{vw2b if dt else vo16}, {W}, s{sw2} offen {SC}", ("w2", i))
        if dt == 1 and s < 21: k(f"s_add_u32 s{sw2}, s{sw2}, 4096")
    def gpoll_setup(h, GC):
        k(f"s_mul_i32 s{spl}, s{sa}, 43\ns_lshr_b32 s{spl}, s{spl}, 7\ns_lshl_b32 s{spl}, s{spl}, 7\ns_add_u32 s{spl}, s{spl}, {GC + h*11*128}")
    def sprinkle(fn, extra, every):
        mark = len(k.lines)
        fn()
        body = k.lines[mark:]; del k.lines[mark:]
        for i, ln in enumerate(body):
            k.lines.append(ln)
            if extra and i % every == every - 1: extra.pop(0)()

    def conv(layer):
        nonlocal p
        XA, ST, XB = (XA0, ST0, XB1) if layer == 0 else (XA2, ST2, XB3)
        CN = CNT + layer * 4 * 8192
        p = POOL
        MH = pv(4); RH = pv(4); tmp = pv(4); XFc = pv(8); T = pv(8); U = pv(4); OUT = pv(4); cacc = pv(16); Bf = pv(64); Y = pv(16)
        NKR = 6; KRg = pv(4 * NKR); w1a = pv(4)
        k(f"v_add_u32 v{vkr}, s{sk16}, v{vo16}\nv_add_u32 v{vkr}, {L_KHI}, v{vkr}\nv_add_u32 v{vpr2}, 65536, v{vkr}")
        kn = [0]
        def kread(a):
            r = KRg + 4 * (kn[0] % NKR); kn[0] += 1
            k.wait_vm(("k", a))
            k.lds_op(f"ds_read_b128 {vr(r,4)}, v{vpr2 if a < 16 else vkr} offset:{1024*(a%16)}", ("kf", kn[0]))
            return r, ("kf", kn[0])
        extra = []
        if layer == 0:
            extra += [lambda a=a: kload(a) for a in range(16, 32)]
            k(f"""
            s_lshl_b32 s{sw2}, s{su}, 15
            s_add_u32 s{sw2}, s{sw2}, {W1F}
            s_cmp_ge_u32 s{su}, 86
            s_cselect_b32 s{sw2}, {BIG}, s{sw2}
            s_cmp_eq_u32 s{sG1}, 0
            s_cselect_b32 s{sw2}, {BIG}, s{sw2}
            """)
            for j in range(4):
                k(f"s_add_u32 s{st1}, s{sw}, {j}\ns_and_b32 s{st1}, s{st1}, 3\ns_lshl_b32 s{st1}, s{st1}, 10\nv_add_u32 v{w1a+j}, s{st1}, v{vo16}")
            def w1load(n):
                j = n % 4
                k.vmem(f"buffer_load_dwordx4 {ar(aW1+4*n,4)}, v{w1a+j}, {W}, s{sw2} offen {SC}", ("w1", n))
                if j == 3: k(f"s_add_u32 s{sw2}, s{sw2}, 4096")
            extra += [lambda n=n: w1load(n) for n in range(32)]
        for h in range(2):
            k.wait_vm("cs")
            stamp(f"C{h}in")
            def part1():
                ln_finalize_pairs(k, CS1, CS2, CS1, CS2, 4, tmp, sinv, seps)
                for j in range(4): k(f"v_mov_b32 v{MH+j}, v{CS1+j}\nv_mov_b32 v{RH+j}, v{CS2+j}")
                for j in range(4):
                    k(f"v_mov_b32_dpp v{MH+j}, v{CS1+j} row_shl:4 row_mask:0xf bank_mask:0x5")
                    k(f"v_mov_b32_dpp v{RH+j}, v{CS2+j} row_shl:4 row_mask:0xf bank_mask:0x5")
                for j in range(4):
                    k(f"v_mov_b32_dpp v{CS1+j}, v{CS1+j} row_shr:4 row_mask:0xf bank_mask:0xa")
                    k(f"v_mov_b32_dpp v{CS2+j}, v{CS2+j} row_shr:4 row_mask:0xf bank_mask:0xa")
            sprinkle(part1, extra, 16)
            k.wait_vm("cx")
            Mr = lambda j: CS1 + 2 * j if j < 2 else MH + 2 * (j - 2)
            Rr = lambda j: CS2 + 2 * j if j < 2 else RH + 2 * (j - 2)
            def part2():
                for j in range(4): unpack(XFc + 2 * j, CX + j)
                for j in range(4): k(f"v_pk_add_f32 {vr(T+2*j,2)}, {vr(XFc+2*j,2)}, {vr(Mr(j),2)}")
                if exact:
                    for j in range(4): k(f"v_cvt_pk_bf16_f32 v{tmp+j}, v{T+2*j}, v{T+2*j+1}")
                    for j in range(4): unpack(T + 2 * j, tmp + j)
                for j in range(4): k(f"v_pk_mul_f32 {vr(T+2*j,2)}, {vr(T+2*j,2)}, {vr(Rr(j),2)}")
                for j in range(4): k(f"v_cvt_pk_bf16_f32 v{U+j}, v{T+2*j}, v{T+2*j+1}")
            sprinkle(part2, extra, 16)
            k.lds_op(f"ds_write_b128 v{vcu}, {vr(U,4)} offset:{512 + 2048*h}", "uw")
            if h == 0 and layer == 0: cloads(XA, ST, 1)
            kq = [kread(a) for a in range(NKR - 1)]; nka = NKR - 1
            if h == 0 and layer == 1: k.wait_vm("bst")
            k.wait_lg("uw")
            k("s_barrier")
            stamp(f"C{h}ln")
            border = [4 * t + 3 - a for a in range(4) for t in range(3, -1, -1)]
            for b in border: k.lds_op(f"ds_read_b128 {vr(Bf+4*b,4)}, v{vbo} offset:{128*b + 2048*h}", ("b", b))
            if h == 0 and layer == 1:
                k(f"s_add_u32 s{sar}, s{sArr}, {CNT + 3*8192}")
                arrive(f"s{sar}")
            if h == 1:
                k(f"s_add_u32 s{spl}, s{sPol}, {CN}")
                poll_issue(f"s{spl}")
            fill = []
            for j in range(4):
                tt = T + 2 * j; u = U + j; xf = XFc + 2 * j
                fill += [f"v_lshlrev_b32 v{tt}, 16, v{u}", f"v_and_b32 v{tt+1}, 0xffff0000, v{u}"]
                if exact:
                    fill += [f"v_mul_f32 v{tt}, v{vD}, v{tt}", f"v_mul_f32 v{tt+1}, v{vD}, v{tt+1}", f"v_cvt_pk_bf16_f32 v{u}, v{tt}, v{tt+1}",
                             f"v_lshlrev_b32 v{tt}, 16, v{u}", f"v_and_b32 v{tt+1}, 0xffff0000, v{u}"]
                else:
                    fill += [f"v_fma_f32 v{tt}, v{vD}, v{tt}, v{xf}", f"v_fma_f32 v{tt+1}, v{vD}, v{tt+1}, v{xf+1}"]
            for f in fill[:10]: k(f)
            fill = fill[10:]
            nm = 0; pend = []
            for a in range(16):
                r, tag = kq.pop(0)
                if a >= 4: k.wait_lg(tag)
                first = True
                for t in range(3, -1, -1):
                    b = 4 * t + 3 - a
                    if b < 0: continue
                    if a < 4 and t % 2 == 1: k.wait_lg(("b", b - 4))
                    c = "0" if (a == 0 and h == 0) else vr(cacc + 4 * t, 4)
                    k(f"v_mfma_f32_16x16x32_bf16 {vr(cacc+4*t,4)}, {vr(r,4)}, {vr(Bf+4*b,4)}, {c}")
                    nm += 1
                    if b == 0: pend.append((nm + 4, t))
                    if first and nka < 16: kq.append(kread(nka)); nka += 1
                    elif pend and pend[0][0] <= nm:
                        tt = pend.pop(0)[1]
                        k.lds_op(f"ds_write_b128 v{vpw}, {vr(cacc+4*tt,4)} offset:{1152*tt}", "pw")
                    elif fill: k(fill.pop(0))
                    first = False
                    if extra and nm % 5 == 2: extra.pop(0)()
            for f in fill: k(f)
            for _, tt in pend: k.lds_op(f"ds_write_b128 v{vpw}, {vr(cacc+4*tt,4)} offset:{1152*tt}", "pw")
            k.wait_lg_all()
            k("s_barrier")
            stamp(f"C{h}near")
            for pp in range(2):
                for hh in range(2):
                    k.lds_op(f"ds_read_b128 {vr(Y+pp*8+hh*4,4)}, v{vpr} offset:{L_P + pp*PW + hh*256}", "y")
            if h == 0:
                kq = [kread(a) for a in range(4, 4 + NKR - 1)]; nka = 4 + NKR - 1
            k(f"s_mov_b32 s{st0}, {XB + h*XB_H}\ns_add_u32 s{sar}, s{sArr}, {CN + h*8192}")
            if h == 1: x_setup(0, XB)
            k.wait_lg("y")
            for j in range(4): k(f"v_pk_add_f32 {vr(Y+2*j,2)}, {vr(Y+2*j,2)}, {vr(Y+8+2*j,2)}")
            if exact:
                for add in (T, XFc):
                    for j in range(4): k(f"v_cvt_pk_bf16_f32 v{tmp+j}, v{Y+2*j}, v{Y+2*j+1}")
                    for j in range(4): unpack(Y + 2 * j, tmp + j)
                    for j in range(4): k(f"v_pk_add_f32 {vr(Y+2*j,2)}, {vr(Y+2*j,2)}, {vr(add+2*j,2)}")
            else:
                for j in range(4): k(f"v_pk_add_f32 {vr(Y+2*j,2)}, {vr(Y+2*j,2)}, {vr(T+2*j,2)}")
            for j in range(4): k(f"v_cvt_pk_bf16_f32 v{OUT+j}, v{Y+2*j}, v{Y+2*j+1}")
            k.vmem(f"buffer_store_dwordx4 {vr(OUT,4)}, v{vcout}, {W}, s{st0} offen {SC}", "cst")
            stamp(f"C{h}st")
            if h == 0:
                if layer == 1:
                    k(f"s_add_u32 s{spl}, s{sPol}, {CNT + 3*8192}")
                    poll_issue(f"s{spl}")
                started = set(); i = 0
                for a in range(4, 32):
                    r, tag = kq.pop(0)
                    k.wait_lg(tag)
                    first = True
                    for t in range(4):
                        b = 4 * (t + 4) + 3 - a
                        if not 0 <= b < 16: continue
                        c = vr(cacc + 4 * t, 4) if t in started else "0"
                        started.add(t)
                        k(f"v_mfma_f32_16x16x32_bf16 {vr(cacc+4*t,4)}, {vr(r,4)}, {vr(Bf+4*b,4)}, {c}")
                        if first and nka < 32:
                            while ("k", nka) not in k.issued: extra.pop(0)()
                            kq.append(kread(nka)); nka += 1
                        first = False
                        if i == opt.get("c0arr", 40):
                            k.wait_vm("cst"); k("s_barrier"); arrive(f"s{sar}")
                            if layer == 1:
                                poll_check(f"s{spl}", 32)
                                cloads(XA, ST, 1)
                        elif extra and i % 4 == 1: extra.pop(0)()
                        i += 1
                stamp("far")
        k(f"s_cmp_eq_u32 s{sG1}, 0\ns_cbranch_scc1 {N}_idle{layer}")
        poll_check(f"s{spl}", 32)
        for _ in range(6): xdma()
        while extra: extra.pop(0)()
        for _ in range(NXPRE - 6): xdma()
        stamp("A0dma")
        if layer == 0:
            ones = XF; rd = XF + 4
            for j in range(4): k(f"v_mov_b32 v{ones+j}, s{sone}")
            for i in range(32):
                k.wait_vm(("w1", i))
                c = "0" if i == 0 else vr(gacc, 16)
                k(f"v_mfma_f32_32x32x16_bf16 {vr(gacc,16)}, {vr(ones,4)}, {ar(aW1+4*i,4)}, {c}")
                if i == 16:
                    k.wait_vm("cst"); k("s_barrier"); arrive(f"s{sar}")
            k(f"""
            v_sub_f32 v{rd}, 0, v{gacc}
            v_cvt_pk_bf16_f32 v{rd+1}, v{rd}, v{rd}
            v_and_b32 v{rd+2}, 0xffff0000, v{rd+1}
            v_sub_f32 v{rd+3}, v{rd}, v{rd+2}
            v_cvt_pk_bf16_f32 v{rd+4}, v{rd}, v{rd+3}
            v_and_b32 v{rd+2}, 0xffff0000, v{rd+4}
            v_sub_f32 v{rd+3}, v{rd+3}, v{rd+2}
            v_mov_b32 v{rd+6}, 0
            v_cvt_pk_bf16_f32 v{rd+5}, v{rd+3}, v{rd+6}
            s_mov_b32 exec_lo, 0
            v_mov_b32 v{rd+4}, 0
            v_mov_b32 v{rd+5}, 0
            s_mov_b32 exec_lo, -1
            v_accvgpr_write_b32 a{aCOR}, v{rd+4}
            v_accvgpr_write_b32 a{aCOR+1}, v{rd+5}
            v_accvgpr_write_b32 a{aCOR+2}, v{rd+6}
            v_accvgpr_write_b32 a{aCOR+3}, v{rd+6}
            """)
            stamp("cs")

    C0 = -2 * LOG2E * math.sqrt(2 / math.pi); C1 = C0 * 0.044715
    def g1(layer):
        XB, H = (XB1, H1) if layer == 0 else (XB3, H2)
        CN = CNT + layer * 4 * 8192; GC = CNT_G + layer * 22 * 128
        w2q = []
        if layer == 0:
            w2_setup(); w2q = [lambda i=i: w2load(i) for i in range(44)]
        hq = []
        curD = [32768] * 4
        for h in range(2):
            for j in range(4): k(f"v_mov_b32 v{SS+j}, 0\nv_mov_b32 v{SQ+j}, 0")
            bars = {0: 0, 1: 1, 2: 3, 4: 5, 6: 7} if h == 0 else {0: 3, 4: 7}
            def ensure(i):
                if i in bars:
                    while any(q[0] == h and q[1] <= bars[i] for q in xq): xdma()
                    k.wait_vm(("x", h, bars[i])); k("s_barrier")
            def reads(ks):
                i, j = ks // 4, ks % 4
                out = []
                if curD[j] != dbase[h][i]:
                    d = dbase[h][i] - curD[j]; curD[j] = dbase[h][i]
                    out.append((f"v_add_u32 v{vtr+j}, {d}, v{vtr+j}" if d > 0 else f"v_subrev_u32 v{vtr+j}, {-d}, v{vtr+j}", None))
                out += [(f"ds_read_b64_tr_b16 {vr(XF+(ks%3)*12+nt*4+2*c,2)}, v{vtr+j} offset:{slot[h][i] - dbase[h][i] + c*768 + nt*64}", ("f", ks))
                        for nt in range(3) for c in range(2)]
                return out
            def put(ins, tag):
                if tag is None: k(ins)
                else: k.lds_op(ins, tag)
            ensure(0)
            if h == 0 and layer == 1: arrive(f"s{sar}")
            stamp(f"A{h}in")
            for ks in (0, 1):
                for ins, tag in reads(ks): put(ins, tag)
            a1poll, a1chk = opt.get("a1poll", 9), opt.get("a1chk", 13)
            bpoll, bchk = opt.get("bpoll", 13), opt.get("bchk", 17)
            for ks in range(32):
                nxt = []
                if ks + 2 < 32:
                    if (ks + 2) % 4 == 0: ensure((ks + 2) // 4)
                    nxt = reads(ks + 2)
                if h == 0 and ks == 22: pass
                if h == 1 and ks == opt.get("a0arr", 5):
                    k.wait_vm("hst"); k("s_barrier"); arrive(f"s{sar}", True)
                k.wait_lg(("f", ks))
                for nt in range(3):
                    c = "0" if ks == 0 else vr(gacc + 16 * nt, 16)
                    k(f"v_mfma_f32_32x32x16_bf16 {vr(gacc+16*nt,16)}, {ar(aW1+4*ks,4)}, {vr(XF+(ks%3)*12+nt*4,4)}, {c}")
                    n = 2 if nt else len(nxt) - 4
                    for ins, tag in nxt[:max(n, 0)]: put(ins, tag)
                    nxt = nxt[max(n, 0):]
                    if nt == 0 or (nt == 1 and ks % 3 == 0):
                        quiet = (h == 0 and a1poll < ks <= a1chk) or (h == 1 and bpoll < ks <= bchk)
                        if xq and (xq[0][0] == h or xq[0][1] < 4 or ks >= 22): xdma()
                        elif hq: hq.pop(0)()
                        elif w2q and not quiet: w2q.pop(0)()
                if h == 0 and ks == a1poll:
                    k(f"s_add_u32 s{spl}, s{sPol}, {CN + 8192}")
                    poll_issue(f"s{spl}")
                if h == 0 and ks == a1chk:
                    poll_check(f"s{spl}", 32)
                    x_setup(1, XB)
                if h == 1 and ks == bpoll:
                    gpoll_setup(0, GC); poll_issue(f"s{spl}", True); h_setup(0, H)
                if h == 1 and ks == bchk:
                    poll_check(f"s{spl}", 22, True)
                    hq = [lambda s=s: hload(0, s) for s in range(NHA)]
                if ks % 4 == 0:
                    for j in range(4):
                        for nt in range(3):
                            x = XF + (ks % 3) * 12 + nt * 4 + j
                            k(f"v_dot2c_f32_bf16 v{SS+nt}, s{sone}, v{x}")
                            k(f"v_dot2c_f32_bf16 v{SQ+nt}, v{x}, v{x}")
                if ks == 29:
                    for nt in range(3): k(f"v_permlane32_swap_b32 v{SS+nt}, v{SQ+nt}")
                    for nt in range(3): k(f"v_add_f32 v{SS+nt}, v{SS+nt}, v{SQ+nt}")
                    k(f"s_lshl_b32 s{st0}, s{sw}, 10\nv_add_u32 v{t1}, s{st0}, v{vst}")
                    k.lds_op(f"ds_write_b128 v{t1}, {vr(SS,4)}", "stw")
            k.wait_lg_all()
            k("s_barrier")
            stamp(f"A{h}main")
            tq = [xdma for _ in xq] + hq + w2q
            nx = len(xq); nh_ = len(hq); ntq = len(tq)
            RD = XF
            for w in range(4): k(f"ds_read_b128 {vr(RD+4*w,4)}, v{vst} offset:{w*1024}")
            for nt in range(3): k(f"v_mov_b32 v{MB+4*nt+2}, 0\nv_mov_b32 v{MB+4*nt+3}, 0")
            k(f"""
            s_mul_i32 s{st0}, s{srb}, {3*86*1024}
            s_lshl_b32 s{st1}, s{su}, 10
            s_add_u32 s{st0}, s{st0}, s{st1}
            s_add_u32 s{st0}, s{st0}, {H + h*32*86*1024}
            s_cmp_ge_u32 s{su}, 86
            s_cselect_b32 s{st0}, {BIG}, s{st0}
            s_lshl_b32 s{sar}, s{srb}, 7
            s_add_u32 s{sar}, s{sar}, {GC + h*11*128}
            s_waitcnt lgkmcnt(0)
            """)
            tmp = atmp; cs_ = acst
            def rnd():
                for i in (0, 2): k(f"v_cvt_pk_bf16_f32 v{tmp+i}, v{SQ+i}, v{SQ+i+1}")
                k(f"v_lshlrev_b32 v{SQ}, 16, v{tmp}\nv_and_b32 v{SQ+1}, 0xffff0000, v{tmp}\nv_lshlrev_b32 v{SQ+2}, 16, v{tmp+2}")
            def stat():
                for st in (8, 4):
                    for j in range(0, st, 2): k(f"v_pk_add_f32 {vr(RD+j,2)}, {vr(RD+j,2)}, {vr(RD+j+st,2)}")
                for i in (0, 2): k(f"v_pk_mul_f32 {vr(SS+i,2)}, {vr(RD+i,2)}, {sr(sinv,2)}")
                for nt in range(3): k(f"v_mov_b32 v{SQ+nt}, v{SS+nt}")
                for nt in range(3): k(f"v_permlane32_swap_b32 v{SS+nt}, v{SQ+nt}")
                for nt in range(3): k(f"v_cvt_pk_bf16_f32 v{MB+4*nt}, v{SS+nt}, v{SS+nt}")
                for nt in range(3): k(f"v_and_b32 v{MB+4*nt+1}, 0xffff, v{MB+4*nt}")
                for nt in range(3): k(f"v_fma_f32 v{SQ+nt}, -v{SS+nt}, v{SS+nt}, v{SQ+nt}")
                for nt in range(3):
                    k(f"v_mfma_f32_32x32x16_bf16 {vr(gacc+16*nt,16)}, {ar(aCOR,4)}, {vr(MB+4*nt,4)}, {vr(gacc+16*nt,16)}")
                rnd()
                for nt in range(3): k(f"v_max_f32 v{SQ+nt}, 0, v{SQ+nt}")
                for nt in range(3): k(f"v_add_f32 v{SQ+nt}, s{seps}, v{SQ+nt}")
                rnd()
                for nt in range(3): k(f"v_sqrt_f32 v{SQ+nt}, v{SQ+nt}")
                rnd()
                for nt in range(3): k(f"v_rcp_f32 v{SS+nt}, v{SQ+nt}")
                for nt in range(3): k(f"v_mul_f32 v{cs_+4*nt+2}, v{SQ+nt}, v{SQ+nt}")
                for nt in range(3): k(f"v_mul_f32 v{cs_+4*nt+1}, {f32(C0)}, v{SS+nt}")
                for nt in range(3): k(f"v_mul_f32 v{cs_+4*nt}, v{SS+nt}, v{SS+nt}")
                for nt in range(3): k(f"v_mul_f32 v{SQ+nt}, {f32(C1)}, v{SS+nt}")
                for nt in range(3): k(f"v_mul_f32 v{cs_+4*nt}, v{cs_+4*nt}, v{SQ+nt}")
            sprinkle(stat, tq, 16)
            stamp(f"A{h}stat")
            for nt in range(3):
                a = gacc + 16 * nt; cc = vr(cs_ + 4 * nt, 2); s2 = vr(cs_ + 4 * nt + 2, 2)
                def epi():
                    for j in range(0, 8, 2): k(f"v_pk_mul_f32 {vr(tmp+j,2)}, {vr(a+j,2)}, {vr(a+j,2)}")
                    for j in range(0, 8, 2): k(f"v_pk_fma_f32 {vr(tmp+j,2)}, {vr(tmp+j,2)}, {cc}, {cc} op_sel:[0,0,1] op_sel_hi:[1,0,1]")
                    for j in range(0, 8, 2): k(f"v_pk_mul_f32 {vr(tmp+j,2)}, {vr(tmp+j,2)}, {vr(a+j,2)}")
                    for j in range(8): k(f"v_exp_f32 v{tmp+j}, v{tmp+j}")
                    for j in range(0, 8, 2): k(f"v_pk_mul_f32 {vr(a+j,2)}, {vr(a+j,2)}, {vr(a+8+j,2)}")
                    for j in range(0, 8, 2): k(f"v_pk_fma_f32 {vr(tmp+j,2)}, {vr(tmp+j,2)}, {s2}, {s2} op_sel:[0,0,0] op_sel_hi:[1,0,0]")
                    for j in range(8): k(f"v_rcp_f32 v{tmp+j}, v{tmp+j}")
                    for j in range(0, 8, 2): k(f"v_pk_mul_f32 {vr(a+j,2)}, {vr(a+j,2)}, {vr(tmp+j,2)}")
                    for j in range(4): k(f"v_cvt_pk_bf16_f32 v{a+8+j}, v{a+2*j}, v{a+2*j+1}")
                sprinkle(epi, tq, 14)
                if nt == 2: k(f"s_cmp_eq_u32 s{srb}, 10\ns_cselect_b32 s{st0}, {BIG}, s{st0}")
                k.vmem(f"buffer_store_dwordx4 {vr(a+8,4)}, v{vo16}, {W}, s{st0} offen {SC}", "hst")
                if nt < 2: k(f"s_add_u32 s{st0}, s{st0}, {86*1024}")
            done = ntq - len(tq)
            hq = hq[max(0, min(nh_, done - nx)):]
            w2q = w2q[max(0, done - nx - nh_):]
            stamp(f"A{h}epi")
        assert curD == [32768] * 4 and not xq
        while hq: hq.pop(0)()
        while w2q: w2q.pop(0)()

    def g2(layer):
        final = layer == 1
        XB, H = (XB1, H1) if layer == 0 else (XB3, H2)
        GC = CNT_G + layer * 22 * 128
        vout, vri, vx1, vx2 = t0, t1, t2, t3
        TR = BT
        RS = 272 if final else 144
        SLAB = (32 if final else 64) * RS
        L_B = L_X; L_R = L_B + 4 * SLAB; L_RI = L_R + 4096; RIS = 144
        for s in range(NHA, 22): hload(0, s)
        a0, a1, a2, a3 = BT, BT + 1, BT + 2, BT + 3
        k(f"""
        s_mul_i32 s{st2}, s{sa}, 43
        s_lshr_b32 s{st2}, s{st2}, 7
        s_mul_i32 s{st0}, s{st2}, 3
        s_sub_u32 s{st0}, s{sa}, s{st0}
        s_lshl_b32 s{st0}, s{st0}, 6
        s_mul_i32 s{sres}, s{st2}, 98304
        s_add_u32 s{sres}, s{sres}, s{st0}
        s_mul_i32 s{st0}, s{sb}, {64*192}
        s_add_u32 s{sres}, s{sres}, s{st0}
        s_add_u32 s{sres}, s{sres}, {XB}
        v_lshrrev_b32 v{a1}, 2, v0
        v_mul_u32_u24 v{vres}, 192, v{a1}
        v_and_b32 v{a2}, 3, v0
        v_lshl_add_u32 v{vres}, v{a2}, 4, v{vres}
        """)
        if final: k(f"s_lshl_b32 s{st1}, s{sw}, 10\ns_add_u32 s{st1}, s{st1}, {L_R}\ns_mov_b32 m0, s{st1}")
        def resload():
            if final: k.vmem(f"buffer_load_dwordx4 v{vres}, {W}, s{sres} offen {SC} lds", "res")
            else: k.vmem(f"buffer_load_dwordx4 {vr(RES,4)}, v{vres}, {W}, s{sres} offen {SC}", "res")
        resload()
        setup = f"""
        v_and_b32 v{a0}, 31, v{lane}
        v_mul_u32_u24 v{a0}, {RS}, v{a0}
        v_lshrrev_b32 v{a3}, 5, v{lane}
        v_lshl_add_u32 v{a0}, v{a3}, 4, v{a0}
        s_mul_i32 s{st0}, s{sw}, {SLAB}
        s_add_u32 s{st0}, s{st0}, {L_B}
        v_add_u32 v{vpw2}, s{st0}, v{a0}
        """
        if not final:
            setup += f"""
            v_mul_u32_u24 v{a0}, {RS}, v{a1}
            v_lshl_add_u32 v{vpr2}, v{a2}, 5, v{a0}
            v_add_u32 v{vpr2}, {L_B}, v{vpr2}
            v_lshlrev_b32 v{vx1}, 7, v{a3}
            v_lshl_add_u32 v{vx1}, v{a2}, 5, v{vx1}
            v_and_b32 v{a0}, 16, v{lane}
            v_add_u32 v{vx1}, v{vx1}, v{a0}
            s_lshl_b32 s{st0}, s{sw}, 8
            s_add_u32 s{st0}, s{st0}, {L_S2}
            v_add_u32 v{vx1}, s{st0}, v{vx1}
            v_lshlrev_b32 v{vx2}, 2, v{lane}
            v_add_u32 v{vx2}, {L_S2}, v{vx2}
            v_and_b32 v{a0}, 31, v{lane}
            v_lshlrev_b32 v{vri}, 2, v{a0}
            v_lshl_add_u32 v{vri}, v{a3}, 13, v{vri}
            s_min_u32 s{st0}, s{sw}, 1
            s_mul_i32 s{st0}, s{st0}, {BIG}
            v_add_u32 v{vri}, s{st0}, v{vri}
            s_lshl_b32 s{sout}, s{sa}, 15
            s_lshl_b32 s{st2}, s{sb}, 12
            s_add_u32 s{sout}, s{sout}, s{st2}
            s_add_u32 s{sout}, s{sout}, {XA2}
            v_mov_b32 v{BT+4}, 0
            v_mov_b32 v{BT+5}, 0
            v_mov_b32 v{BT+6}, 0
            v_mov_b32 v{BT+7}, 0
            v_mul_u32_u24 v{a0}, {UB - 512}, v{a3}
            v_add_u32 v{a0}, v{vo16}, v{a0}
            ds_write_b128 v{a0}, {vr(BT+4,4)}
            """
        else:
            setup += f"""
            v_lshrrev_b32 v{a1}, 3, v0
            v_and_b32 v{a2}, 7, v0
            v_mul_u32_u24 v{a0}, {RS}, v{a1}
            v_lshl_add_u32 v{vpr2}, v{a2}, 5, v{a0}
            v_add_u32 v{vpr2}, {L_B}, v{vpr2}
            v_lshlrev_b32 v{vout}, 10, v{a1}
            v_lshl_add_u32 v{vout}, v{a2}, 4, v{vout}
            v_mul_u32_u24 v{a0}, {RIS}, v{a1}
            v_lshl_add_u32 v{vri}, v{a2}, 4, v{a0}
            v_add_u32 v{vri}, {L_RI}, v{vri}
            v_lshlrev_b32 v{a0}, 3, v{a3}
            v_bfe_u32 v{a1}, v{lane}, 2, 2
            v_add_u32 v{a0}, v{a0}, v{a1}
            v_lshlrev_b32 v{a0}, 6, v{a0}
            v_bfe_u32 v{a1}, v{lane}, 4, 1
            v_lshl_add_u32 v{a0}, v{a1}, 5, v{a0}
            v_and_b32 v{a1}, 3, v{lane}
            v_lshl_add_u32 v{a0}, v{a1}, 3, v{a0}
            v_add_u32 v{vx1}, s{st1}, v{a0}
            v_and_b32 v{a0}, 31, v{lane}
            v_mul_u32_u24 v{a0}, {RIS}, v{a0}
            v_lshl_add_u32 v{a0}, v{a3}, 4, v{a0}
            s_lshl_b32 s{st0}, s{sw}, 5
            s_add_u32 s{st0}, s{st0}, {L_RI}
            v_add_u32 v{vx2}, s{st0}, v{a0}
            s_lshl_b32 s{sout}, s{sa}, 15
            s_lshl_b32 s{st2}, s{sb}, 7
            s_add_u32 s{sout}, s{sout}, s{st2}
            """
        setup = [l.strip() for l in setup.split("\n") if l.strip()]
        kq = []
        for h in range(2):
            stamp(f"B{h}in")
            for s in range(22):
                k.wait_vm(("h", h, s))
                if layer == 0 and h == 0: k.wait_vm(("w2", 2 * s + 1))
                for dt in range(2):
                    c = "0" if s == 0 else vr(bacc + 16 * dt, 16)
                    A_, B_ = (Rreg(2*s+dt), hreg(s)) if final else (hreg(s), Rreg(2*s+dt))
                    k(f"v_mfma_f32_32x32x16_bf16 {vr(bacc+16*dt,16)}, {A_}, {B_}, {c}")
                    for _ in range(4):
                        if setup: k(setup.pop(0))
                if kq: kq.pop(0)()
                if h == 0 and s == opt.get("a1arr", 11):
                    k.wait_vm("hst"); k("s_barrier"); arrive(f"s{sar}", True)
                    if not final: kq = [lambda a=a: kload(a) for a in range(8)]
                if h == 1 and not final and s == opt.get("b0arr", 4):
                    k.wait_vm("bst"); k("s_barrier")
                    k(f"s_add_u32 s{sar}, s{sArr}, {CNT + 2*8192}"); arrive(f"s{sar}")
                    kq = [lambda a=a: kload(a) for a in range(8, 16)]
                if final and s == 16:
                    k.wait_vm("res")
                    for c in range(2): k(f"ds_read_b64_tr_b16 {vr(TR+2*c,2)}, v{vx1} offset:{c*256}")
                if final and s == 18:
                    k(f"s_waitcnt lgkmcnt(0)\nds_write_b128 v{vx2}, {vr(TR,4)}")
            assert not kq
            stamp(f"B{h}main")
            for dt in range(2):
                for q in range(4):
                    off = (dt * 128 + q * 32) if final else (dt * 32 * RS + q * 32)
                    k(f"ds_write_b128 v{vpw2}, {vr(bacc+16*dt+4*q,4)} offset:{off}")
            if h == 0:
                h_setup(1, H); gpoll_setup(1, GC); poll_issue(f"s{spl}", True)
            elif not final:
                k(f"s_add_u32 s{spl}, s{sPol}, {CNT + 2*8192}"); poll_issue(f"s{spl}")
            k("s_waitcnt lgkmcnt(0)\ns_barrier")
            stamp(f"B{h}pw")
            y = bacc
            for sl in range(4):
                for hh in range(2):
                    k.lds_op(f"ds_read_b128 {vr(y+sl*8+hh*4,4)}, v{vpr2} offset:{sl*SLAB + hh*16}", ("y", sl))
            if final: k.lds_op(f"ds_read_b128 {vr(RES,4)}, v{vri}", ("y", 4))
            else:
                k.wait_vm("res")
                for j in range(4): unpack(BT + 8 + 2 * j, RES + j)
            k.wait_lg(("y", 1))
            for j in range(4): k(f"v_pk_add_f32 {vr(y+2*j,2)}, {vr(y+2*j,2)}, {vr(y+8+2*j,2)}")
            k.wait_lg_all()
            for j in range(4): k(f"v_pk_add_f32 {vr(y+16+2*j,2)}, {vr(y+16+2*j,2)}, {vr(y+24+2*j,2)}")
            if final:
                for j in range(4): unpack(BT + 8 + 2 * j, RES + j)
            for j in range(4): k(f"v_pk_add_f32 {vr(y+2*j,2)}, {vr(y+2*j,2)}, {vr(y+16+2*j,2)}")
            if exact:
                for j in range(4): k(f"v_cvt_pk_bf16_f32 v{y+8+j}, v{y+2*j}, v{y+2*j+1}")
                for j in range(4): unpack(y + 2 * j, y + 8 + j)
            for j in range(4): k(f"v_pk_add_f32 {vr(y+2*j,2)}, {vr(y+2*j,2)}, {vr(BT+8+2*j,2)}")
            OB = BT + 4
            for j in range(4): k(f"v_cvt_pk_bf16_f32 v{OB+j}, v{y+2*j}, v{y+2*j+1}")
            if final: k.vmem(f"buffer_store_dwordx4 {vr(OB,4)}, v{vout}, s[{rOUT}:{rOUT+3}], s{sout} offen", "bst")
            else: k.vmem(f"buffer_store_dwordx4 {vr(OB,4)}, v{vt16}, {W}, s{sout} offen {SC}", "bst")
            stamp(f"B{h}st")
            if not final:
                Sm = y + 16; Sq = y + 24
                for j in range(4): unpack(Sm + 2 * j, OB + j)
                for j in range(4): k(f"v_pk_mul_f32 {vr(Sq+2*j,2)}, {vr(Sm+2*j,2)}, {vr(Sm+2*j,2)}")
                for e in range(8): k(f"v_permlane32_swap_b32 v{Sm+e}, v{Sq+e}")
                for j in range(4): k(f"v_pk_add_f32 {vr(Sm+2*j,2)}, {vr(Sm+2*j,2)}, {vr(Sq+2*j,2)}")
                for e in range(4): k(f"v_permlane16_swap_b32 v{Sm+e}, v{Sm+4+e}")
                for j in range(2): k(f"v_pk_add_f32 {vr(Sm+2*j,2)}, {vr(Sm+2*j,2)}, {vr(Sm+4+2*j,2)}")
                for e in range(4): k(f"v_add_f32_dpp v{Sm+e}, v{Sm+e}, v{Sm+e} row_ror:8 row_mask:0xf bank_mask:0xf")
                for e in range(4): k(f"v_add_f32_dpp v{Sm+e}, v{Sm+e}, v{Sm+e} row_ror:4 row_mask:0xf bank_mask:0xf")
                k(f"""
                ds_write_b128 v{vx1}, {vr(Sm,4)}
                s_lshl_b32 s{st1}, s{sa}, 7
                s_add_u32 s{st1}, s{st1}, {ST2 + h*4096}
                s_waitcnt lgkmcnt(0)
                s_barrier
                ds_read_b32 v{Sm}, v{vx2}
                ds_read_b32 v{Sm+1}, v{vx2} offset:256
                ds_read_b32 v{Sm+2}, v{vx2} offset:512
                ds_read_b32 v{Sm+3}, v{vx2} offset:768
                s_waitcnt lgkmcnt(0)
                v_add_f32 v{Sm}, v{Sm}, v{Sm+1}
                v_add_f32 v{Sm+2}, v{Sm+2}, v{Sm+3}
                v_add_f32 v{BT}, v{Sm}, v{Sm+2}
                """)
                k.vmem(f"buffer_atomic_add_f32 v{BT}, v{vri}, {W}, s{st1} offen {SC}", "bst")
                stamp(f"B{h}sa")
            elif h == 0:
                k("s_barrier")
            if h == 0:
                poll_check(f"s{spl}", 22, True)
                k(f"s_add_u32 s{sres}, s{sres}, {XB_H}\ns_add_u32 s{sout}, s{sout}, {32*32768}")
                for s in range(22): hload(1, s)
                resload()
            elif not final:
                poll_check(f"s{spl}", 32)
                cloads(XA2, ST2, 0)
                for a in range(16, 32): kload(a)

    idle_vm = {}
    for layer in range(2):
        conv(layer)
        g1(layer)
        k(f"{N}_B{layer}:")
        g2(layer)
        if layer == 0 and diag:
            stamp("Bend")
            k(f"""
            s_lshl_b32 s{st0}, s2, 10
            s_add_u32 s{st0}, s{st0}, {TS}
            v_lshlrev_b32 v{t0}, 2, v0
            """)
            k.vmem(f"buffer_store_dword v{vstamp}, v{t0}, {W}, s{st0} offen", "dg")
            k(f"s_mov_b64 s[{sIdx}:{sIdx+1}], 2\ns_nop 1\nv_mov_b32 v{vstamp}, 0")
            cur[0] = 1
    if diag:
        k("s_waitcnt vmcnt(0)")
        stamp("end")
        k(f"""
        s_memrealtime s[{sStampB}:{sStampB+1}]
        s_waitcnt lgkmcnt(0)
        v_writelane_b32 v{vstamp}, s{sStampB}, 63
        s_lshl_b32 s{st0}, s2, 10
        s_add_u32 s{st0}, s{st0}, {TS + 0x40000}
        v_lshlrev_b32 v{t0}, 2, v0
        buffer_store_dword v{vstamp}, v{t0}, {W}, s{st0} offen
        """)
    k(f"{N}_end:\ns_endpgm")
    for layer in range(2):
        H = H1 if layer == 0 else H2; GC = CNT_G + layer * 22 * 128
        k(f"{N}_idle{layer}:")
        k.vm = []
        k("s_waitcnt vmcnt(0)\ns_barrier")
        arrive(f"s{sar}")
        if layer == 0:
            w2_setup()
            for i in range(44): w2load(i)
        gpoll_setup(0, GC); h_setup(0, H)
        poll_issue(f"s{spl}", True)
        poll_check(f"s{spl}", 22, True, sleep=40)
        for s in range(NHA): hload(0, s)
        k(f"s_mov_b32 s{sar}, {BIG}\ns_waitcnt vmcnt(0)\ns_branch {N}_B{layer}")
    for sl in slow: k(sl)
    k(f"{N}_codeend:\ns_endpgm")
    assert k.ns <= 102, k.ns
    k.names = names
    return k

HDR = open("interleave_layers__ssm_conv_s4d__glu_gated_geglu__prompt.s.ref").read().split("; Override launch")[0]
def write(path, k):
    s = HDR + f"; @launch grid=({k.grid},1,1) block=({k.block},1,1) lds={k.lds}\n" + HEADER + k.text() + '.section .rodata,"a"\n' + k.desc()
    open(path, "w").write(s)
    print(path, "sgpr", k.ns, "nops", k.inserted, "lines", len(k.lines))
if __name__ == "__main__":
    import json
    write("mega.s", make())
    kd = make(diag=True)
    write("megad.s", kd)
    json.dump(kd.names, open("megad.json", "w"))
    print([len(n) for n in kd.names])
```
